```python
import torch

def _softmax(x, axis=-1):
    return torch.softmax(x, dim=axis)
def _gelu(x):
    return torch.nn.functional.gelu(x, approximate="tanh")
def _silu(x):
    return torch.nn.functional.silu(x)
def _sigmoid(x):
    return torch.sigmoid(x)
def _layernorm(x, axis=-1, eps=1e-5):
    m = x.mean(dim=axis, keepdim=True)
    v = x.var(dim=axis, keepdim=True, unbiased=False)
    return (x - m) / torch.sqrt(v + eps)
def _scatter_add(tgt, idx, src, axis=0):
    return tgt.clone().index_add_(axis, idx, src)
def _segment_sum(src, seg, n):
    out = torch.zeros((n,) + src.shape[1:], dtype=src.dtype)
    return out.index_add_(0, seg, src)
def _pad(x, pw):
    flat = tuple(v for pair in reversed(pw) for v in pair)
    return torch.nn.functional.pad(x, flat)

kernel_name = 'gated_mix__sliding_block_cached__dense_activation_gelu__decode'

def setup_inputs():

    _w = (lambda a: (lambda t: t.to(torch.bfloat16) if t.is_floating_point() else t)(torch.as_tensor(a)))
    def _A_setup():
        B, Sq, D = 2, 1, 512
        Hq, Hkv, Sk, Dh = 32, 8, 8192, 128
        assert Hq % Hkv == 0, (Hq, Hkv)
        return {
            "x": _w((lambda *s: torch.randn(*s, dtype=torch.bfloat16) * 0.05)(B, Sq, D)),
            "k_cache": _w((lambda *s: torch.randn(*s, dtype=torch.bfloat16) * 6.4)(B, Hkv, Sk, Dh)),
            "v_cache": _w((lambda *s: torch.randn(*s, dtype=torch.bfloat16) * 0.4)(B, Hkv, Sk, Dh)),
            "wq": _w((lambda *s: torch.randn(*s, dtype=torch.bfloat16) * 6.4)(D, Hq * Dh) * (D ** -0.5)),
            "wo": _w((lambda *s: torch.randn(*s, dtype=torch.bfloat16) * 0.4)(Hq * Dh, D) * ((Hq * Dh) ** -0.5)),
        }
    _A_in = _A_setup()

    def _B_setup():
        B, S, D, F = 2, 1, 512, 1792
        return {
            "x": _w((lambda *s: torch.randn(*s, dtype=torch.bfloat16) * 0.05)(B, S, D)),
            "w1": _w((lambda *s: torch.randn(*s, dtype=torch.bfloat16) * 3.2)(D, F) * (D ** -0.5)),
            "b1": _w((lambda *s: torch.randn(*s, dtype=torch.bfloat16) * 3.2)(F) * 0.01),
            "w2": _w((lambda *s: torch.randn(*s, dtype=torch.bfloat16) * 0.4)(F, D) * (F ** -0.5)),
            "b2": _w((lambda *s: torch.randn(*s, dtype=torch.bfloat16) * 0.8)(D) * 0.01),
        }
    _B_in = _B_setup()

    return {
        "A_x": _A_in["x"],
        "A_k_cache": _A_in["k_cache"],
        "A_v_cache": _A_in["v_cache"],
        "A_wq": _A_in["wq"],
        "A_wo": _A_in["wo"],
        "B_x": _B_in["x"],
        "B_w1": _B_in["w1"],
        "B_b1": _B_in["b1"],
        "B_w2": _B_in["w2"],
        "B_b2": _B_in["b2"],
        "gate_w": _w((lambda *s: torch.randn(*s, dtype=torch.bfloat16) * 0.2)(512) * 16.0),
    }

def reference(A_x, A_k_cache, A_v_cache, A_wq, A_wo, B_x, B_w1, B_b1, B_w2, B_b2, gate_w):
    def _A_ref(x, k_cache, v_cache, wq, wo):
        B, Sq, D = x.shape
        Hq, Dh = 32, 128
        Hkv, Sk = k_cache.shape[1], k_cache.shape[2]
        W = min(4096, max(256, Sk // 4))
        rep = Hq // Hkv
        q = (lambda x, *d: x.permute(*d))((x @ wq).reshape(B, Sq, Hq, Dh), 0, 2, 1, 3)
        k = (lambda x, n, axis: torch.repeat_interleave(x, n, dim=axis))(k_cache[:, :, Sk - W:, :], rep, axis=1)
        v = (lambda x, n, axis: torch.repeat_interleave(x, n, dim=axis))(v_cache[:, :, Sk - W:, :], rep, axis=1)
        scores = torch.einsum("bhqd,bhkd->bhqk", q, k) * (Dh ** -0.5)
        p = _softmax(scores, axis=-1)
        o = torch.einsum("bhqk,bhkd->bhqd", p, v)
        return (lambda x, *d: x.permute(*d))(o, 0, 2, 1, 3).reshape(B, Sq, Hq * Dh) @ wo

    def _B_ref(x, w1, b1, w2, b2):
        h = torch.einsum("bsd,df->bsf", x, w1) + b1
        h = _gelu(h)
        return torch.einsum("bsf,fd->bsd", h, w2) + b2

    x = A_x
    g = _sigmoid((x * gate_w).sum(-1, keepdims=True))
    a = _A_ref(x, A_k_cache, A_v_cache, A_wq, A_wo)
    b = _B_ref(x, B_w1, B_b1, B_w2, B_b2)
    return g * a + (1 - g) * b
```

```python
import sys
NAME = "gated_mix__sliding_block_cached__dense_activation_gelu__decode"

HEADER = open("cdna_kernels/" + NAME + ".s.ref").read().split("; Override launch")[0]

WS_QP = 0x10000
WS_HP = 0x40000
WS_OP = 0x80000
WS_ML = 0x180000
WS_CP = 0x200000
WS_ST = 0x800000
WS_SIZE = 0x1000000

F_Q, F_VI, F_OW, F_OP, F_QR, F_CR, F_HR = 0, 4, 8, 12, 16, 20, 24
L_Q = 0x100
L_QRED = 0x600
L_HRED = 0xA00
L_MLW = 0xE00
L_CRED = 0x1000
L_OW = 0x2000
LDS_BYTES = 0x4000

LOG2E = 1.4426950408889634
import struct
def f2u(f): return struct.unpack("<I", struct.pack("<f", f))[0]

class G:
    def __init__(self): self.L = []; self.n = 0
    def __call__(self, s): self.L.append("    " + s)
    def label(self, n): self.L.append(n + ":")
    def uniq(self, p): self.n += 1; return f"L_{p}_{self.n}"

def gen(out, stamps=False, KVWIN=6, nt="nt", mimic=True):
    A = G()
    st_idx = [0]
    def stamp():
        if stamps:
            i = st_idx[0]; st_idx[0] += 1
            assert i < 14
            A(f"s_memrealtime s[{64+2*i}:{65+2*i}]")
    def stamp_reset(n): st_idx[0] = n
    def srd(d, lo, hi, n):
        if lo != f"s{d}": A(f"s_mov_b32 s{d}, {lo}")
        if hi != f"s{d+1}": A(f"s_mov_b32 s{d+1}, {hi}")
        A(f"s_mov_b32 s{d+2}, {n}")
        A(f"s_mov_b32 s{d+3}, 0x20000")
    def srd_off(d, p, offreg, n):
        A(f"s_add_u32 s{d}, s{p}, {offreg}")
        A(f"s_addc_u32 s{d+1}, s{p+1}, 0")
        A(f"s_mov_b32 s{d+2}, {n}")
        A(f"s_mov_b32 s{d+3}, 0x20000")
    def lds_flag_add(off):
        A("s_mov_b64 exec, 1")
        A(f"ds_add_u32 v2, v3 offset:{off}")
        A("s_mov_b64 exec, -1")
    def lds_wait(off, target, spec_reads, cap=200000):
        lp = A.uniq("ldsw"); done = A.uniq("ldsd")
        A(f"s_mov_b32 s7, {cap}")
        A.label(lp)
        A(f"ds_read_b32 v4, v2 offset:{off}")
        for r in spec_reads: A(r)
        A("s_waitcnt lgkmcnt(0)")
        A("v_readfirstlane_b32 s6, v4")
        A(f"s_cmp_ge_u32 s6, {target}")
        A(f"s_cbranch_scc1 {done}")
        A("s_sub_u32 s7, s7, 1")
        A("s_cmp_lg_u32 s7, 0")
        A(f"s_cbranch_scc1 {lp}")
        A.label(done)
    def gpoll(loads, tagregs, cap=20000, execmask=None):
        lp = A.uniq("gp"); done = A.uniq("gd")
        A(f"s_mov_b32 s7, {cap}")
        A.label(lp)
        for r in loads: A(r)
        A("s_waitcnt vmcnt(0)")
        for t in tagregs: A(f"v_cmpx_eq_u32 vcc, s36, v{t}")
        A("s_nop 1")
        A("s_cmp_eq_u64 exec, -1")
        A("s_mov_b64 exec, -1")
        A(f"s_cbranch_scc1 {done}")
        A("s_sub_u32 s7, s7, 1")
        A("s_cmp_lg_u32 s7, 0")
        A(f"s_cbranch_scc1 {lp}")
        A.label(done)
    def write_stamps():
        if not stamps: return
        n = 14
        A("s_waitcnt lgkmcnt(0)")
        A("s_getreg_b32 s92, hwreg(HW_REG_XCC_ID)")
        for i in range(n): A(f"v_mov_b32 v{100+i}, s{64+2*i}")
        A("v_mov_b32 v114, s92")
        A("v_mov_b32 v115, s7")
        A("s_lshl_b32 s3, s2, 3")
        A("s_add_u32 s3, s3, s37")
        A("s_lshl_b32 s3, s3, 7")
        A(f"s_add_u32 s3, s3, {WS_ST}")
        A("s_mov_b64 exec, 1")
        for i in range(4):
            A(f"buffer_store_dwordx4 v[{100+4*i}:{103+4*i}], v2, s[52:55], s3 offen offset:{16*i}")
        A("s_mov_b64 exec, -1")

    A.L.append(HEADER.rstrip())
    A.L.append(f"; @launch grid=(256,1,1) block=(512,1,1) lds={LDS_BYTES}")
    A.L.append('.amdgcn_target "amdgcn-amd-amdhsa--gfx950"')
    A.L.append(".text")
    A.L.append(f".globl {NAME}_kernel")
    A.L.append(".p2align 8")
    A.L.append(f".type {NAME}_kernel,@function")
    A.label(f"{NAME}_kernel")
    if stamps:
        for i in range(14): pass
        A("s_memrealtime s[64:65]"); st_idx[0] = 1
    A("s_cmp_ge_u32 s2, 256")
    A("s_cbranch_scc1 L_end")
    A("s_load_dwordx16 s[8:23], s[0:1], 0")
    A("s_load_dwordx8 s[24:31], s[0:1], 64")
    A("s_load_dwordx2 s[34:35], s[0:1], 104")
    if stamps:
        for i in range(1, 14):
            A(f"s_mov_b32 s{64+2*i}, 0")
    A("v_lshrrev_b32 v5, 6, v0")
    A("v_and_b32 v1, 63, v0")
    A("v_readfirstlane_b32 s37, v5")
    A("v_mov_b32 v2, 0")
    A("v_mov_b32 v3, 1")
    A("s_and_b32 s38, s2, 7")
    A("s_lshr_b32 s39, s2, 3")
    A("v_lshrrev_b32 v6, 4, v1")
    A("v_and_b32 v7, 15, v1")
    A("s_cmp_ge_u32 s37, 4")
    A("s_cbranch_scc1 L_wrole")

    A("v_mov_b32 v8, 0"); A("v_mov_b32 v9, 0"); A("v_mov_b32 v10, 0"); A("v_mov_b32 v11, 0")
    A("ds_write_b128 v2, v[8:11]")
    A("ds_write_b128 v2, v[8:11] offset:16")
    A("s_lshr_b32 s3, s39, 4")
    A("s_lshl_b32 s3, s3, 24")
    A("s_lshl_b32 s4, s38, 21")
    A("s_add_u32 s3, s3, s4")
    A("s_and_b32 s4, s39, 15")
    A("s_lshl_b32 s4, s4, 15")
    A("s_add_u32 s3, s3, s4")
    A("s_lshl_b32 s4, s37, 13")
    A("s_add_u32 s3, s3, s4")
    A("s_add_u32 s3, s3, 0x180000")
    A("v_lshlrev_b32 v8, 8, v7")
    A("v_lshl_add_u32 v8, v6, 4, v8")
    A("v_lshlrev_b32 v9, 10, v6")
    A("v_lshl_add_u32 v9, v7, 4, v9")
    A("s_mov_b32 s5, 4096")
    A("s_waitcnt lgkmcnt(0)")
    A("s_load_dword s36, s[34:35], 0")
    srd_off(40, 10, "s3", 8192)
    srd_off(44, 12, "s3", 8192)
    srd(52, "s34", "s35", WS_SIZE)
    stamp()
    A("s_barrier")
    KR, VR = 16, 48
    seq = []
    for j in range(8):
        seq.append(f"buffer_load_dwordx4 v[{KR+4*j}:{KR+4*j+3}], v8, s[40:43], {'s5' if j>=4 else '0'} offen offset:{(j&3)*64} {nt}")
    for j in range(8):
        seq.append(f"buffer_load_dwordx4 v[{VR+4*j}:{VR+4*j+3}], v9, s[44:47], {'s5' if j>=4 else '0'} offen offset:{(j&3)*256} {nt}")
    for j, l in enumerate(seq):
        if j >= KVWIN: A(f"s_waitcnt vmcnt({KVWIN-1})")
        A(l)
    lds_flag_add(F_VI)
    stamp()
    A("v_and_b32 v10, 3, v1")
    A("v_mov_b32 v11, 0xffff")
    A("v_mov_b32 v12, 0xffff0000")
    A("v_cmp_eq_u32 vcc, 0, v10"); A("s_nop 1"); A("v_cndmask_b32 v13, 0, v11, vcc")
    A("v_cmp_eq_u32 vcc, 1, v10"); A("s_nop 1"); A("v_cndmask_b32 v13, v13, v12, vcc")
    A("v_cmp_eq_u32 vcc, 2, v10"); A("s_nop 1"); A("v_cndmask_b32 v14, 0, v11, vcc")
    A("v_cmp_eq_u32 vcc, 3, v10"); A("s_nop 1"); A("v_cndmask_b32 v14, v14, v12, vcc")
    A("v_lshrrev_b32 v10, 2, v7")
    A("v_mul_u32_u24 v10, 272, v10")
    A("v_lshl_add_u32 v10, v6, 4, v10")
    QR = 80
    lds_wait(F_Q, 4, [f"ds_read_b128 v[{QR+4*d}:{QR+4*d+3}], v10 offset:{L_Q+64*d}" for d in range(4)])
    stamp()
    A("s_mul_i32 s36, s36, 0x9E3779B1")
    A("s_add_u32 s36, s36, 0x7F4A7C15")
    A("s_waitcnt vmcnt(8)")
    SR = 96
    for d in range(4):
        for t in range(2):
            c = "0" if d == 0 else f"v[{SR+4*t}:{SR+4*t+3}]"
            A(f"v_mfma_f32_16x16x32_bf16 v[{SR+4*t}:{SR+4*t+3}], v[{KR+16*t+4*d}:{KR+16*t+4*d+3}], v[{QR+4*d}:{QR+4*d+3}], {c}")
    A("s_nop 7")
    SC = 128 ** -0.5
    if mimic:
        A(f"s_mov_b32 s4, {f2u(SC):#x}")
        for i in range(0, 8, 2):
            A(f"v_cvt_pk_bf16_f32 v{104+i//2}, v{SR+i}, v{SR+i+1}")
        for i in range(0, 8, 2):
            A(f"v_lshlrev_b32 v{SR+i}, 16, v{104+i//2}")
            A(f"v_and_b32 v{SR+i+1}, 0xffff0000, v{104+i//2}")
        for i in range(8):
            A(f"v_mul_f32 v{SR+i}, s4, v{SR+i}")
        for i in range(0, 8, 2):
            A(f"v_cvt_pk_bf16_f32 v{104+i//2}, v{SR+i}, v{SR+i+1}")
        for i in range(0, 8, 2):
            A(f"v_lshlrev_b32 v{SR+i}, 16, v{104+i//2}")
            A(f"v_and_b32 v{SR+i+1}, 0xffff0000, v{104+i//2}")
        CE = LOG2E
    else:
        CE = LOG2E * SC
    A(f"v_max3_f32 v104, v{SR}, v{SR+1}, v{SR+2}")
    A(f"v_max3_f32 v105, v{SR+3}, v{SR+4}, v{SR+5}")
    A(f"v_max3_f32 v104, v104, v{SR+6}, v{SR+7}")
    A("v_max_f32 v104, v104, v105")
    A("v_mov_b32 v105, v104")
    A("s_nop 1")
    A("v_permlane32_swap_b32 v104, v105")
    A("v_max_f32 v104, v104, v105")
    A("v_mov_b32 v105, v104")
    A("s_nop 1")
    A("v_permlane16_swap_b32 v104, v105")
    A("v_max_f32 v104, v104, v105")
    A(f"s_mov_b32 s4, {f2u(CE):#x}")
    A("v_mul_f32 v104, s4, v104")
    for i in range(8):
        A(f"v_fma_f32 v{SR+i}, v{SR+i}, s4, -v104")
    for i in range(8):
        A(f"v_exp_f32 v{SR+i}, v{SR+i}")
    A("s_nop 0")
    AR = 108
    for i in range(8):
        A(f"v_cvt_pk_bf16_f32 v{AR+2*i+1}, v{SR+i}, v{SR+i}")
    for i in range(8):
        A(f"v_and_b32 v{AR+2*i}, v{AR+2*i+1}, v13")
        A(f"v_and_b32 v{AR+2*i+1}, v{AR+2*i+1}, v14")
    A(f"v_add_f32 v105, v{SR}, v{SR+1}")
    A(f"v_add_f32 v106, v{SR+2}, v{SR+3}")
    A(f"v_add_f32 v107, v{SR+4}, v{SR+5}")
    A(f"v_add_f32 v{SR}, v{SR+6}, v{SR+7}")
    A("v_add_f32 v105, v105, v106")
    A(f"v_add_f32 v107, v107, v{SR}")
    A("v_add_f32 v105, v105, v107")
    A("v_mov_b32 v106, v105")
    A("s_nop 1")
    A("v_permlane32_swap_b32 v105, v106")
    A("v_add_f32 v105, v105, v106")
    A("v_mov_b32 v106, v105")
    A("s_nop 1")
    A("v_permlane16_swap_b32 v105, v106")
    A("v_add_f32 v105, v105, v106")
    A("s_lshl_b32 s4, s37, 5")
    A("v_lshlrev_b32 v106, 1, v7")
    A("v_add_u32 v106, s4, v106")
    A("s_mov_b64 exec, 0x1111")
    A(f"ds_write_b64 v106, v[104:105] offset:{L_MLW}")
    A("s_mov_b64 exec, -1")
    stamp()
    OR_ = 124
    for j in range(8):
        A(f"s_waitcnt vmcnt({7-j})")
        c0 = "0" if j == 0 else f"v[{OR_}:{OR_+3}]"
        c1 = "0" if j == 0 else f"v[{OR_+4}:{OR_+7}]"
        A(f"v_mfma_f32_16x16x16_bf16 v[{OR_}:{OR_+3}], v[{AR+2*j}:{AR+2*j+1}], v[{VR+4*j}:{VR+4*j+1}], {c0}")
        A(f"v_mfma_f32_16x16x16_bf16 v[{OR_+4}:{OR_+7}], v[{AR+2*j}:{AR+2*j+1}], v[{VR+4*j+2}:{VR+4*j+3}], {c1}")
    stamp()
    A("s_lshl_b32 s4, s37, 11")
    A("v_lshlrev_b32 v106, 5, v1")
    A("v_add_u32 v106, s4, v106")
    A("s_lshl_b32 s4, s37, 9")
    A("v_lshlrev_b32 v107, 3, v1")
    A("v_add_u32 v107, s4, v107")
    A("s_lshl_b32 s4, s37, 3")
    A("v_mov_b32 v108, s4")
    A("s_nop 4")
    A(f"ds_write_b128 v106, v[{OR_}:{OR_+3}] offset:{L_OW}")
    A(f"ds_write_b128 v106, v[{OR_+4}:{OR_+7}] offset:{L_OW+16}")
    lds_flag_add(F_OW)
    rd = [f"ds_read_b64 v[{16+2*w}:{17+2*w}], v108 offset:{L_MLW+32*w}" for w in range(4)]
    rd += [f"ds_read_b64 v[{24+2*w}:{25+2*w}], v107 offset:{L_OW+2048*w}" for w in range(4)]
    lds_wait(F_OW, 4, rd)
    A("v_max3_f32 v32, v16, v18, v20")
    A("v_max_f32 v32, v32, v22")
    for w in range(4):
        A(f"v_sub_f32 v{36+w}, v{16+2*w}, v32")
    for w in range(4):
        A(f"v_exp_f32 v{36+w}, v{36+w}")
    A("v_mov_b32 v41, s36"); A("v_mov_b32 v43, s36"); A("v_mov_b32 v33, s36"); A("v_mov_b32 v35, s36")
    A("v_mul_f32 v40, v36, v24")
    A("v_mul_f32 v42, v36, v25")
    A("v_mul_f32 v34, v36, v17")
    for w in range(1, 4):
        A(f"v_fmac_f32 v40, v{36+w}, v{24+2*w}")
        A(f"v_fmac_f32 v42, v{36+w}, v{25+2*w}")
        A(f"v_fmac_f32 v34, v{36+w}, v{17+2*w}")
    A("s_lshl_b32 s3, s38, 5")
    A("s_add_u32 s3, s3, s39")
    A("s_lshl_b32 s3, s3, 12")
    A("s_lshl_b32 s4, s37, 10")
    A("s_add_u32 s3, s3, s4")
    A(f"s_add_u32 s3, s3, {WS_OP}")
    A("v_lshlrev_b32 v44, 4, v1")
    A("buffer_store_dwordx4 v[40:43], v44, s[52:55], s3 offen sc1")
    A("s_lshr_b32 s4, s39, 4")
    A("s_lshl_b32 s3, s38, 1")
    A("s_add_u32 s3, s3, s4")
    A("s_lshl_b32 s3, s3, 2")
    A("s_add_u32 s3, s3, s37")
    A("s_lshl_b32 s3, s3, 4")
    A("s_and_b32 s4, s39, 15")
    A("s_add_u32 s3, s3, s4")
    A("s_lshl_b32 s3, s3, 4")
    A(f"s_add_u32 s3, s3, {WS_ML}")
    A("s_mov_b64 exec, 1")
    A("buffer_store_dwordx4 v[32:35], v2, s[52:55], s3 offen sc1")
    A(f"ds_add_u32 v2, v3 offset:{F_OP}")
    A("s_mov_b64 exec, -1")
    stamp()
    write_stamps()
    A("s_endpgm")

    A.label("L_wrole")
    stamp_reset(1)
    A("s_sub_u32 s37, s37, 4")
    A("v_and_b32 v8, 1, v1")
    A("v_mov_b32 v9, 0x0c0c0100"); A("v_mov_b32 v10, 0x01000c0c")
    A("v_mov_b32 v11, 0x0c0c0302"); A("v_mov_b32 v12, 0x03020c0c")
    A("v_cmp_eq_u32 vcc, 1, v8")
    A("s_lshr_b32 s3, s39, 4")
    A("s_lshl_b32 s3, s3, 2")
    A("s_add_u32 s3, s3, s37")
    A("v_cndmask_b32 v13, v9, v10, vcc")
    A("v_cndmask_b32 v14, v11, v12, vcc")
    A("s_lshl_b32 s5, s3, 7")
    A("s_lshl_b32 s3, s3, 19")
    A("s_lshl_b32 s4, s38, 10")
    A("s_add_u32 s3, s3, s4")
    A("s_and_b32 s4, s39, 15")
    A("s_lshl_b32 s4, s4, 6")
    A("s_add_u32 s3, s3, s4")
    A("v_lshlrev_b32 v8, 17, v6")
    A("v_lshl_add_u32 v8, v7, 2, v8")
    A("v_bfe_u32 v9, v1, 1, 1")
    A("v_lshlrev_b32 v9, 10, v9")
    A("v_lshl_add_u32 v10, v6, 5, v9")
    A("v_lshl_add_u32 v11, v6, 4, v9")
    A("s_waitcnt lgkmcnt(0)")
    A("s_load_dword s36, s[34:35], 0")
    srd(44, "s8", "s9", 2048)
    srd_off(40, 14, "s3", 64 * 8192)
    XR = 16; WR = 24
    A(f"buffer_load_dwordx4 v[{XR}:{XR+3}], v10, s[44:47], s5 offen")
    A(f"buffer_load_dwordx4 v[{XR+4}:{XR+7}], v10, s[44:47], s5 offen offset:16")
    for j in range(16):
        if j == 0:
            A(f"buffer_load_dword v{WR+j}, v8, s[40:43], 0 offen {nt}")
        else:
            A(f"s_mov_b32 s4, {j*8192}")
            A(f"buffer_load_dword v{WR+j}, v8, s[40:43], s4 offen {nt}")
    stamp()
    A("s_barrier")
    srd(52, "s34", "s35", WS_SIZE)
    A("s_getpc_b64 s[48:49]")
    A.label("L_pc")
    A(f"s_sub_u32 s48, s48, L_pc-{NAME}_kernel")
    A("s_subb_u32 s49, s49, 0")
    A("v_lshlrev_b32 v15, 7, v1")
    A(f"v_min_u32 v15, L_end-{NAME}_kernel, v15")
    A("global_load_dword v60, v15, s[48:49]")
    srd(48, "s28", "s29", 1024)
    A("v_lshlrev_b32 v15, 4, v1")
    A("buffer_load_dwordx4 v[64:67], v15, s[44:47], 0 offen")
    A("buffer_load_dwordx4 v[68:71], v15, s[44:47], 0 offen offset:1024")
    A("buffer_load_dwordx4 v[72:75], v15, s[48:51], 0 offen")
    A("s_and_b32 s4, s39, 3")
    A("s_lshl_b32 s4, s4, 2")
    A("s_add_u32 s4, s4, s37")
    A("s_lshl_b32 s4, s4, 6")
    A("buffer_load_dwordx4 v[76:79], v11, s[44:47], s4 offen")
    AQ = 40
    A("s_waitcnt vmcnt(21)")
    for i in range(4):
        A(f"v_perm_b32 v{AQ+4*i}, v{XR+2*i}, v{XR+2*i}, v13")
        A(f"v_perm_b32 v{AQ+4*i+1}, v{XR+2*i}, v{XR+2*i}, v14")
        A(f"v_perm_b32 v{AQ+4*i+2}, v{XR+2*i+1}, v{XR+2*i+1}, v13")
        A(f"v_perm_b32 v{AQ+4*i+3}, v{XR+2*i+1}, v{XR+2*i+1}, v14")
    DQ = 56
    for i in range(4):
        A(f"s_waitcnt vmcnt({5 + 12 - 4*i})")
        c = "0" if i == 0 else f"v[{DQ}:{DQ+3}]"
        A(f"v_mfma_f32_16x16x32_bf16 v[{DQ}:{DQ+3}], v[{AQ+4*i}:{AQ+4*i+3}], v[{WR+4*i}:{WR+4*i+3}], {c}")
    stamp()
    A("s_waitcnt lgkmcnt(0)")
    A("s_mul_i32 s36, s36, 0x9E3779B1")
    A("s_add_u32 s36, s36, 0x7F4A7C15")
    A("s_lshl_b32 s4, s37, 8")
    A("v_lshlrev_b32 v15, 4, v7")
    A("v_add_u32 v15, s4, v15")
    A("v_and_b32 v62, 1, v6")
    A("v_lshlrev_b32 v62, 3, v62")
    A("v_lshl_add_u32 v62, v7, 4, v62")
    A("s_nop 2")
    A("s_mov_b64 exec, 0xffff")
    A(f"ds_write_b128 v15, v[{DQ}:{DQ+3}] offset:{L_QRED}")
    A("s_mov_b64 exec, 1")
    A(f"ds_add_u32 v2, v3 offset:{F_QR}")
    A("s_mov_b64 exec, -1")
    lds_wait(F_QR, 4, [f"ds_read_b64 v[{24+2*w}:{25+2*w}], v62 offset:{L_QRED+256*w}" for w in range(4)])
    A("s_cmp_lg_u32 s37, 0")
    A("s_cbranch_scc1 L_noqpub")
    A("v_add_f32 v32, v24, v26"); A("v_add_f32 v34, v25, v27")
    A("v_add_f32 v28, v28, v30"); A("v_add_f32 v29, v29, v31")
    A("v_mov_b32 v33, s36"); A("v_mov_b32 v35, s36")
    A("v_add_f32 v32, v32, v28"); A("v_add_f32 v34, v34, v29")
    A("s_lshl_b32 s3, s38, 14")
    A("s_lshr_b32 s4, s39, 4")
    A("s_lshl_b32 s4, s4, 12")
    A("s_add_u32 s3, s3, s4")
    A("s_and_b32 s4, s39, 15")
    A("s_lshl_b32 s4, s4, 8")
    A("s_add_u32 s3, s3, s4")
    A(f"s_add_u32 s3, s3, {WS_QP}")
    A("v_lshlrev_b32 v36, 13, v6")
    A("v_lshl_add_u32 v36, v7, 4, v36")
    A("s_mov_b64 exec, 0xffffffff")
    A("buffer_store_dwordx4 v[32:35], v36, s[52:55], s3 offen sc1")
    A("s_mov_b64 exec, -1")
    A.label("L_noqpub")
    stamp()
    A("s_lshl_b32 s3, s38, 14")
    A("s_lshr_b32 s4, s39, 4")
    A("s_lshl_b32 s4, s4, 13")
    A("s_add_u32 s3, s3, s4")
    A("s_lshl_b32 s4, s37, 10")
    A("s_add_u32 s3, s3, s4")
    A(f"s_add_u32 s3, s3, {WS_QP}")
    A("s_add_u32 s4, s3, 4096")
    A("v_lshlrev_b32 v36, 4, v1")
    gpoll(["buffer_load_dwordx4 v[24:27], v36, s[52:55], s3 offen sc1",
           "buffer_load_dwordx4 v[28:31], v36, s[52:55], s4 offen sc1"], [25, 27, 29, 31])
    A("v_add_f32 v24, v24, v28")
    A("v_add_f32 v26, v26, v30")
    A("s_mul_i32 s4, s37, 272")
    A("v_lshlrev_b32 v36, 2, v1")
    A("v_add_u32 v36, s4, v36")
    A("v_cvt_pk_bf16_f32 v24, v24, v26")
    A(f"ds_write_b32 v36, v24 offset:{L_Q}")
    lds_flag_add(F_Q)
    stamp()
    def unpack(dst, src):
        A(f"v_lshlrev_b32 v{dst}, 16, v{src}")
        A(f"v_and_b32 v{dst+1}, 0xffff0000, v{src}")
    for i in range(4): unpack(24 + 2*i, 72 + i)
    for bb in range(2):
        for i in range(4): unpack(32 + 2*i, 64 + 4*bb + i)
        for i in range(8): A(f"v_mul_f32 v{32+i}, v{32+i}, v{24+i}")
        for i in range(4): A(f"v_cvt_pk_bf16_f32 v{40+i}, v{32+2*i}, v{33+2*i}")
        for i in range(4): unpack(32 + 2*i, 40 + i)
        A("v_add_f32 v32, v32, v33"); A("v_add_f32 v34, v34, v35"); A("v_add_f32 v36, v36, v37"); A("v_add_f32 v38, v38, v39")
        A("v_add_f32 v32, v32, v34"); A("v_add_f32 v36, v36, v38")
        A(f"v_add_f32 v{44+bb}, v32, v36")
    def allreduce64(regs, tmp):
        for mode in ["quad_perm:[1,0,3,2]", "quad_perm:[2,3,0,1]", "row_half_mirror", "row_mirror"]:
            A("s_nop 1")
            for r in regs: A(f"v_add_f32_dpp v{r}, v{r}, v{r} {mode} row_mask:0xf bank_mask:0xf")
        for sw in ["v_permlane16_swap_b32", "v_permlane32_swap_b32"]:
            for k, r in enumerate(regs): A(f"v_mov_b32 v{tmp+k}, v{r}")
            A("s_nop 1")
            for k, r in enumerate(regs): A(f"{sw} v{r}, v{tmp+k}")
            for k, r in enumerate(regs): A(f"v_add_f32 v{r}, v{r}, v{tmp+k}")
    allreduce64([44, 45], 46)
    A("v_cmp_lt_u32 vcc, 31, v1")
    A("s_nop 1")
    A("v_cndmask_b32 v44, v44, v45, vcc")
    A("v_cvt_pk_bf16_f32 v44, v44, v44")
    A("v_and_b32 v44, 0xffff0000, v44")
    A(f"v_mul_f32 v44, {f2u(-LOG2E):#x}, v44")
    A("v_exp_f32 v44, v44")
    A("s_nop 0")
    A("v_add_f32 v44, 1.0, v44")
    A("v_rcp_f32 v44, v44")
    A("s_nop 0")
    A("v_cvt_pk_bf16_f32 v44, v44, v44")
    A("v_and_b32 v80, 0xffff0000, v44")
    A("v_sub_f32 v81, 1.0, v80")
    A("v_cvt_pk_bf16_f32 v81, v81, v81")
    A("v_and_b32 v81, 0xffff0000, v81")
    AH = 84
    for i in range(2):
        A(f"v_perm_b32 v{AH+4*i}, v{76+2*i}, v{76+2*i}, v13")
        A(f"v_perm_b32 v{AH+4*i+1}, v{76+2*i}, v{76+2*i}, v14")
        A(f"v_perm_b32 v{AH+4*i+2}, v{76+2*i+1}, v{76+2*i+1}, v13")
        A(f"v_perm_b32 v{AH+4*i+3}, v{76+2*i+1}, v{76+2*i+1}, v14")
    A("s_and_b32 s3, s39, 3")
    A("s_lshl_b32 s3, s3, 2")
    A("s_add_u32 s3, s3, s37")
    A(f"s_mul_i32 s3, s3, {32*3584}")
    A("s_mul_i32 s4, s38, 448")
    A("s_add_u32 s3, s3, s4")
    A("s_lshr_b32 s4, s39, 2")
    A("s_lshl_b32 s4, s4, 6")
    A("s_add_u32 s3, s3, s4")
    srd_off(40, 20, "s3", 31*3584 + 64)
    A(f"v_mul_u32_u24 v8, {8*3584}, v6")
    A("v_lshl_add_u32 v8, v7, 2, v8")
    A("s_lshl_b32 s3, s38, 19")
    A("s_lshr_b32 s4, s39, 2")
    A("s_lshl_b32 s4, s4, 16")
    A("s_add_u32 s3, s3, s4")
    A("s_lshl_b32 s4, s37, 14")
    A("s_add_u32 s3, s3, s4")
    A("s_and_b32 s4, s39, 3")
    A("s_lshl_b32 s4, s4, 8")
    A("s_add_u32 s3, s3, s4")
    srd_off(44, 16, "s3", 15*1024 + 256)
    A("v_lshlrev_b32 v9, 12, v6")
    A("v_lshl_add_u32 v9, v7, 4, v9")
    A("s_mul_i32 s3, s38, 224")
    A("s_lshr_b32 s4, s39, 2")
    A("s_mul_i32 s4, s4, 28")
    A("s_add_u32 s5, s3, s4")
    A("s_lshl_b32 s3, s5, 10")
    A("s_and_b32 s4, s39, 3")
    A("s_lshl_b32 s4, s4, 8")
    A("s_add_u32 s3, s3, s4")
    srd_off(48, 24, "s3", 27*1024 + 256)
    A("v_lshlrev_b32 v10, 10, v6")
    A("v_lshl_add_u32 v10, v7, 4, v10")
    A("s_lshl_b32 s4, s37, 12")
    A("v_add_u32 v10, s4, v10")
    srd(56, "s22", "s23", 3584)
    A("s_lshl_b32 s4, s37, 2")
    A("s_add_u32 s4, s4, s5")
    A("v_add_u32 v11, s4, v6")
    A("v_lshlrev_b32 v11, 1, v11")
    A("buffer_load_ushort v82, v11, s[56:59], 0 offen")
    A("buffer_load_ushort v83, v11, s[56:59], 0 offen offset:32")
    A("s_and_b32 s4, s2, 127")
    A("s_lshl_b32 s4, s4, 3")
    A("s_load_dwordx2 s[60:61], s[26:27], s4")
    lds_wait(F_VI, 4, [])
    stamp()
    W1R = 24; WOR = 32; W2R = 48
    A("s_cmp_ge_u32 s39, 28")
    A("s_cbranch_scc1 L_now1")
    for j in range(8):
        if j == 0:
            A(f"buffer_load_dword v{W1R+j}, v8, s[40:43], 0 offen {nt}")
        else:
            A(f"s_mov_b32 s4, {j*3584}")
            A(f"buffer_load_dword v{W1R+j}, v8, s[40:43], s4 offen {nt}")
    A.label("L_now1")
    for t in range(4):
        A(f"buffer_load_dwordx4 v[{WOR+4*t}:{WOR+4*t+3}], v9, s[44:47], 0 offen offset:{t*1024} {nt}")
    A("s_mov_b32 s4, 16384")
    A(f"buffer_load_dwordx4 v[{W2R}:{W2R+3}], v10, s[48:51], 0 offen {nt}")
    A(f"buffer_load_dwordx4 v[{W2R+4}:{W2R+7}], v10, s[48:51], s4 offen {nt}")
    A("s_cmp_ge_u32 s39, 28")
    A("s_cbranch_scc1 L_noh")
    DH = 56
    A("s_waitcnt vmcnt(10)")
    A(f"v_mfma_f32_16x16x32_bf16 v[{DH}:{DH+3}], v[{AH}:{AH+3}], v[{W1R}:{W1R+3}], 0")
    A("s_waitcnt vmcnt(6)")
    A(f"v_mfma_f32_16x16x32_bf16 v[{DH}:{DH+3}], v[{AH+4}:{AH+7}], v[{W1R+4}:{W1R+7}], v[{DH}:{DH+3}]")
    A("s_nop 7")
    A("s_mov_b64 exec, 0xffff")
    A(f"ds_write_b128 v15, v[{DH}:{DH+3}] offset:{L_HRED}")
    A("s_mov_b64 exec, 1")
    A(f"ds_add_u32 v2, v3 offset:{F_HR}")
    A("s_mov_b64 exec, -1")
    A("s_cmp_lg_u32 s37, 1")
    A("s_cbranch_scc1 L_noh")
    lds_wait(F_HR, 4, [f"ds_read_b64 v[{24+2*w}:{25+2*w}], v62 offset:{L_HRED+256*w}" for w in range(4)])
    A("v_add_f32 v56, v24, v26"); A("v_add_f32 v58, v25, v27")
    A("v_add_f32 v28, v28, v30"); A("v_add_f32 v29, v29, v31")
    A("v_mov_b32 v57, s36"); A("v_mov_b32 v59, s36")
    A("v_add_f32 v56, v56, v28"); A("v_add_f32 v58, v58, v29")
    A("s_mul_i32 s3, s38, 14336")
    A("s_lshr_b32 s4, s39, 2")
    A("s_lshl_b32 s4, s4, 10")
    A("s_add_u32 s3, s3, s4")
    A("s_and_b32 s4, s39, 3")
    A("s_lshl_b32 s4, s4, 3")
    A("s_add_u32 s3, s3, s4")
    A(f"s_add_u32 s3, s3, {WS_HP}")
    A("v_mul_u32_u24 v60, 7168, v6")
    A("v_lshl_add_u32 v60, v7, 6, v60")
    A("s_mov_b64 exec, 0xffffffff")
    A("buffer_store_dwordx2 v[56:57], v60, s[52:55], s3 offen sc1")
    A("buffer_store_dwordx2 v[58:59], v60, s[52:55], s3 offen offset:32 sc1")
    A("s_mov_b64 exec, -1")
    A.label("L_noh")
    stamp()
    A("v_bfe_u32 v24, v1, 3, 1")
    A("v_and_b32 v25, 7, v1")
    A("v_lshlrev_b32 v26, 16, v24")
    A("v_lshl_add_u32 v26, v25, 13, v26")
    A("v_lshl_add_u32 v26, v6, 5, v26")
    A("s_lshl_b32 s3, s38, 17")
    A("s_lshr_b32 s4, s39, 2")
    A("s_lshl_b32 s4, s4, 9")
    A("s_add_u32 s3, s3, s4")
    A("s_lshl_b32 s4, s37, 7")
    A("s_add_u32 s3, s3, s4")
    A(f"s_add_u32 s3, s3, {WS_OP}")
    A("s_add_u32 s4, s3, 4096")
    A("v_lshlrev_b32 v27, 10, v24")
    A("v_lshl_add_u32 v27, v25, 5, v27")
    A("s_lshl_b32 s5, s38, 11")
    A("s_lshr_b32 s6, s39, 3")
    A("s_lshl_b32 s6, s6, 8")
    A("s_add_u32 s5, s5, s6")
    A(f"s_add_u32 s5, s5, {WS_ML}")
    A("v_mul_u32_u24 v28, 7168, v24")
    A("v_lshl_add_u32 v28, v6, 5, v28")
    A("s_mul_i32 s62, s38, 14336")
    A("s_lshr_b32 s6, s39, 2")
    A("s_mul_i32 s6, s6, 896")
    A("s_add_u32 s62, s62, s6")
    A("s_lshl_b32 s6, s37, 7")
    A("s_add_u32 s62, s62, s6")
    A(f"s_add_u32 s62, s62, {WS_HP}")
    A("s_add_u32 s63, s62, 512")
    A("s_cmp_eq_u32 s37, 3")
    A("s_cselect_b32 s63, s62, s63")
    A("v_mov_b32 v29, 0xffff")
    A("v_mov_b32 v30, 0xffff0000")
    A("v_and_b32 v31, 1, v1")
    A("v_cmp_eq_u32 vcc, 1, v31")
    A("s_nop 1")
    A("v_cndmask_b32 v29, v29, v30, vcc")
    A("v_lshrrev_b32 v31, 1, v25")
    for r in range(4):
        A(f"v_cmp_eq_u32 vcc, {r}, v31")
        A("s_nop 1")
        A(f"v_cndmask_b32 v{92+r}, 0, v29, vcc")
    lds_wait(F_OP, 4, [])
    stamp()
    O0 = 96
    M0 = 112
    H0 = 120
    loads = [f"buffer_load_dwordx4 v[{M0}:{M0+3}], v27, s[52:55], s5 offen sc1",
             f"buffer_load_dwordx4 v[{M0+4}:{M0+7}], v27, s[52:55], s5 offen offset:16 sc1",
             f"buffer_load_dwordx4 v[{O0}:{O0+3}], v26, s[52:55], s3 offen sc1",
             f"buffer_load_dwordx4 v[{O0+4}:{O0+7}], v26, s[52:55], s3 offen offset:16 sc1",
             f"buffer_load_dwordx4 v[{O0+8}:{O0+11}], v26, s[52:55], s4 offen sc1",
             f"buffer_load_dwordx4 v[{O0+12}:{O0+15}], v26, s[52:55], s4 offen offset:16 sc1",
             f"buffer_load_dwordx4 v[{H0}:{H0+3}], v28, s[52:55], s62 offen sc1",
             f"buffer_load_dwordx4 v[{H0+4}:{H0+7}], v28, s[52:55], s62 offen offset:16 sc1",
             f"buffer_load_dwordx4 v[{H0+8}:{H0+11}], v28, s[52:55], s63 offen sc1",
             f"buffer_load_dwordx4 v[{H0+12}:{H0+15}], v28, s[52:55], s63 offen offset:16 sc1"]
    tags = [r for r in range(O0 + 1, H0 + 16, 2)]
    gpoll(loads, tags)
    stamp()
    A(f"v_max_f32 v24, v{M0}, v{M0+4}")
    def red8(op, regs):
        for mode in ["quad_perm:[1,0,3,2]", "quad_perm:[2,3,0,1]", "row_half_mirror"]:
            A("s_nop 1")
            for r in regs: A(f"{op}_dpp v{r}, v{r}, v{r} {mode} row_mask:0xf bank_mask:0xf")
    red8("v_max_f32", [24])
    A(f"v_sub_f32 v25, v{M0}, v24")
    A(f"v_sub_f32 v26, v{M0+4}, v24")
    A("v_exp_f32 v25, v25")
    A("v_exp_f32 v26, v26")
    A(f"v_add_f32 v{H0}, v{H0}, v{H0+2}"); A(f"v_add_f32 v{H0+4}, v{H0+4}, v{H0+6}")
    A(f"v_add_f32 v{H0+8}, v{H0+8}, v{H0+10}"); A(f"v_add_f32 v{H0+12}, v{H0+12}, v{H0+14}")
    A(f"v_add_f32 v{H0}, v{H0}, v{H0+4}"); A(f"v_add_f32 v{H0+1}, v{H0+8}, v{H0+12}")
    A(f"v_mul_f32 v27, v25, v{M0+2}")
    A(f"v_fmac_f32 v27, v26, v{M0+6}")
    for t in range(4):
        A(f"v_mul_f32 v{28+t}, v25, v{O0+2*t}")
        A(f"v_fmac_f32 v{28+t}, v26, v{O0+8+2*t}")
    red8("v_add_f32", [27, 28, 29, 30, 31])
    A("v_rcp_f32 v27, v27")
    A(f"v_cvt_pk_bf16_f32 v{H0+2}, v{H0}, v{H0+1}")
    A(f"v_lshlrev_b32 v{H0}, 16, v{H0+2}")
    A(f"v_and_b32 v{H0+1}, 0xffff0000, v{H0+2}")
    A("v_lshlrev_b32 v82, 16, v82"); A("v_lshlrev_b32 v83, 16, v83")
    A(f"v_add_f32 v{H0}, v{H0}, v82"); A(f"v_add_f32 v{H0+1}, v{H0+1}, v83")
    A(f"v_cvt_pk_bf16_f32 v{H0+2}, v{H0}, v{H0+1}")
    A(f"v_lshlrev_b32 v{H0}, 16, v{H0+2}")
    A(f"v_and_b32 v{H0+1}, 0xffff0000, v{H0+2}")
    for t in range(4):
        A(f"v_mul_f32 v{28+t}, v{28+t}, v27")
    for t in range(4):
        A(f"v_cvt_pk_bf16_f32 v{28+t}, v{28+t}, v{28+t}")
    AO = 96
    for t in range(4):
        for r in range(4):
            A(f"v_and_b32 v{AO+4*t+r}, v{28+t}, v{92+r}")
    A("s_nop 0")
    DA = 24; DB = 28
    for t in range(4):
        c = "0" if t == 0 else f"v[{DA}:{DA+3}]"
        A(f"v_mfma_f32_16x16x32_bf16 v[{DA}:{DA+3}], v[{AO+4*t}:{AO+4*t+3}], v[{WOR+4*t}:{WOR+4*t+3}], {c}")
    import math
    kk = 2 * math.sqrt(2 / math.pi) * LOG2E
    A(f"s_mov_b32 s3, {f2u(0.044715):#x}")
    A(f"s_mov_b32 s4, {f2u(-kk):#x}")
    for i in range(2):
        A(f"v_mul_f32 v{H0+4+i}, v{H0+i}, v{H0+i}")
    for i in range(2):
        A(f"v_fma_f32 v{H0+4+i}, v{H0+4+i}, s3, 1.0")
    for i in range(2):
        A(f"v_mul_f32 v{H0+4+i}, v{H0+4+i}, v{H0+i}")
    for i in range(2):
        A(f"v_mul_f32 v{H0+4+i}, s4, v{H0+4+i}")
    for i in range(2):
        A(f"v_exp_f32 v{H0+4+i}, v{H0+4+i}")
    A("s_nop 0")
    for i in range(2):
        A(f"v_add_f32 v{H0+4+i}, 1.0, v{H0+4+i}")
    for i in range(2):
        A(f"v_rcp_f32 v{H0+4+i}, v{H0+4+i}")
    A("s_nop 0")
    for i in range(2):
        A(f"v_mul_f32 v{H0+4+i}, v{H0+4+i}, v{H0+i}")
    for i in range(2):
        A(f"v_cvt_pk_bf16_f32 v{H0+4+i}, v{H0+4+i}, v{H0+4+i}")
    AB = 112
    for i in range(2):
        for r in range(4):
            A(f"v_and_b32 v{AB+4*i+r}, v{H0+4+i}, v{92+r}")
    A("s_nop 1")
    A(f"v_mfma_f32_16x16x32_bf16 v[{DB}:{DB+3}], v[{AB}:{AB+3}], v[{W2R}:{W2R+3}], 0")
    A(f"v_mfma_f32_16x16x32_bf16 v[{DB}:{DB+3}], v[{AB+4}:{AB+7}], v[{W2R+4}:{W2R+7}], v[{DB}:{DB+3}]")
    A("s_lshl_b32 s4, s37, 10")
    A("v_lshlrev_b32 v60, 4, v1")
    A("v_add_u32 v60, s4, v60")
    A("s_lshl_b32 s4, s37, 8")
    A("v_lshlrev_b32 v61, 3, v1")
    A("v_add_u32 v61, s4, v61")
    A("s_lshr_b32 s3, s37, 1")
    A("s_lshl_b32 s3, s3, 7")
    A("s_and_b32 s4, s39, 3")
    A("s_lshl_b32 s4, s4, 5")
    A("s_add_u32 s3, s3, s4")
    A("s_and_b32 s4, s37, 1")
    A("s_add_u32 s3, s3, s4")
    A("s_lshl_b32 s3, s3, 11")
    A("s_lshl_b32 s4, s38, 8")
    A("s_add_u32 s3, s3, s4")
    A("s_lshr_b32 s4, s39, 2")
    A("s_lshl_b32 s4, s4, 5")
    A("s_add_u32 s3, s3, s4")
    A(f"s_add_u32 s3, s3, {WS_CP}")
    A("v_lshrrev_b32 v62, 1, v1")
    A("v_lshlrev_b32 v62, 12, v62")
    A("v_and_b32 v63, 1, v1")
    A("v_lshl_add_u32 v62, v63, 4, v62")
    for i in range(4):
        A(f"v_mul_f32 v{DA+i}, v{DA+i}, v80")
    for i in range(4):
        A(f"v_fmac_f32 v{DA+i}, v{DB+i}, v81")
    A(f"ds_write_b128 v60, v[{DA}:{DA+3}] offset:{L_CRED}")
    lds_flag_add(F_CR)
    lds_wait(F_CR, 4, [f"ds_read_b64 v[{32+2*w}:{33+2*w}], v61 offset:{L_CRED+1024*w}" for w in range(4)])
    A("v_add_f32 v40, v32, v34"); A("v_add_f32 v42, v33, v35")
    A("v_add_f32 v36, v36, v38"); A("v_add_f32 v37, v37, v39")
    A("v_mov_b32 v41, s36"); A("v_mov_b32 v43, s36")
    A("v_add_f32 v40, v40, v36"); A("v_add_f32 v42, v42, v37")
    A("s_mov_b64 exec, 0xffffffff")
    A("buffer_store_dwordx4 v[40:43], v62, s[52:55], s3 offen sc1")
    A("s_mov_b64 exec, -1")
    stamp()
    A("s_cmp_lg_u32 s37, 0")
    A("s_cbranch_scc1 L_wdone")
    A("s_lshl_b32 s3, s2, 11")
    A(f"s_add_u32 s3, s3, {WS_CP}")
    A("v_lshlrev_b32 v60, 5, v1")
    srd(56, "s30", "s31", 2048)
    gpoll(["buffer_load_dwordx4 v[24:27], v60, s[52:55], s3 offen sc1",
           "buffer_load_dwordx4 v[28:31], v60, s[52:55], s3 offen offset:16 sc1"], [25, 27, 29, 31])
    stamp()
    allreduce64([24, 26, 28, 30], 32)
    A("s_lshr_b32 s4, s2, 7")
    A("s_lshl_b32 s4, s4, 5")
    A("s_nop 3")
    A("v_readlane_b32 s5, v81, s4")
    A("s_lshl_b32 s3, s60, 16"); A("s_and_b32 s4, s60, 0xffff0000")
    A("s_lshl_b32 s6, s61, 16"); A("s_and_b32 s63, s61, 0xffff0000")
    A("v_mov_b32 v36, s5")
    A("v_fmac_f32 v24, s3, v36"); A("v_fmac_f32 v26, s4, v36"); A("v_fmac_f32 v28, s6, v36"); A("v_fmac_f32 v30, s63, v36")
    A("v_cvt_pk_bf16_f32 v24, v24, v26")
    A("v_cvt_pk_bf16_f32 v25, v28, v30")
    A("s_lshl_b32 s3, s2, 3")
    A("s_mov_b64 exec, 1")
    A("buffer_store_dwordx2 v[24:25], v2, s[56:59], s3 offen")
    A("s_cmp_lg_u32 s2, 0")
    A("s_cbranch_scc1 L_noep")
    A("v_mov_b32 v26, s36")
    A("buffer_store_dword v26, v2, s[52:55], 0 offen sc1")
    A.label("L_noep")
    A("s_mov_b64 exec, -1")
    stamp()
    A.label("L_wdone")
    A("s_add_u32 s37, s37, 4")
    write_stamps()
    A.label("L_end")
    A("s_endpgm")
    A.L.append('.section .rodata,"a"')
    A.L.append(".p2align 6")
    A.L.append(f".amdhsa_kernel {NAME}_kernel")
    A.L.append("  .amdhsa_next_free_vgpr 136")
    A.L.append("  .amdhsa_next_free_sgpr 96")
    A.L.append("  .amdhsa_accum_offset 136")
    A.L.append("  .amdhsa_group_segment_fixed_size 0")
    A.L.append("  .amdhsa_kernarg_size 112")
    A.L.append("  .amdhsa_user_sgpr_count 2")
    A.L.append("  .amdhsa_user_sgpr_kernarg_segment_ptr 1")
    A.L.append("  .amdhsa_system_sgpr_workgroup_id_x 1")
    A.L.append(".end_amdhsa_kernel")
    open(out, "w").write("\n".join(A.L) + "\n")

if __name__ == "__main__":
    gen("v1.s", stamps=False)
    gen("v1_st.s", stamps=True)
```

```python
import sys, math, struct
NAME = "gated_mix__sliding_block_cached__dense_activation_gelu__decode"
HEADER = open("cdna_kernels/" + NAME + ".s.ref").read().split("; Override launch")[0]

WS_QP = 0x10000
WS_HP = 0x20000
WS_ML = 0x30000
WS_OP = 0x80000
WS_CP = 0x180000
WS_ST = 0x800000
WS_SIZE = 0x1000000

F_Q, F_PR, F_OW, F_OP, F_QR, F_A, F_HR, F_MX, F_QP, F_CP = 0, 4, 8, 12, 16, 20, 24, 28, 32, 36
L_G = 0x40
L_OB = 0x80
L_HB = 0x180
L_Q = 0x200
L_QRED = 0x680
L_HRED = 0x880
L_MX = 0xA80
L_LW = 0xAC0
L_X = 0xC00
L_OW = 0x1400
L_WQ = 0x3400
L_K = 0x7400
L_V = 0xF400
L_W1 = 0x17400
L_WO = 0x19400
L_W2 = 0x1D400
LDS_BYTES = 0x1F400

LOG2E = 1.4426950408889634
def f2u(f): return struct.unpack("<I", struct.pack("<f", f))[0]

class G:
    def __init__(self): self.L = []; self.n = 0
    def __call__(self, s): self.L.append("    " + s)
    def label(self, n): self.L.append(n + ":")
    def uniq(self, p): self.n += 1; return f"L_{p}_{self.n}"

def gen(out, stamps=False, WIN=24, KPRE=4, nt="nt", mimic=True, QSETS=3, QSLEEP=4, VSPLIT=6, WIN2=None):
    A = G()
    if WIN2 is None: WIN2 = WIN
    st_idx = [0]
    def stamp():
        if stamps:
            i = st_idx[0]; st_idx[0] += 1
            assert i < 14
            A(f"s_memrealtime s[{64+2*i}:{65+2*i}]")
    def stamp_reset(n): st_idx[0] = n
    def srd(d, lo, hi, n):
        if lo != f"s{d}": A(f"s_mov_b32 s{d}, {lo}")
        if hi != f"s{d+1}": A(f"s_mov_b32 s{d+1}, {hi}")
        A(f"s_mov_b32 s{d+2}, {n}")
        A(f"s_mov_b32 s{d+3}, 0x20000")
    def srd_off(d, p, offreg, n):
        A(f"s_add_u32 s{d}, s{p}, {offreg}")
        A(f"s_addc_u32 s{d+1}, s{p+1}, 0")
        A(f"s_mov_b32 s{d+2}, {n}")
        A(f"s_mov_b32 s{d+3}, 0x20000")
    def lds_flag_add(off):
        A("s_mov_b64 exec, 1")
        A(f"ds_add_u32 v2, v3 offset:{off}")
        A("s_mov_b64 exec, -1")
    def lds_wait(off, target, spec_reads, cap=200000):
        lp = A.uniq("ldsw"); done = A.uniq("ldsd")
        A(f"s_mov_b32 s7, {cap}")
        A.label(lp)
        A(f"ds_read_b32 v4, v2 offset:{off}")
        for r in spec_reads: A(r)
        A("s_waitcnt lgkmcnt(0)")
        A("v_readfirstlane_b32 s6, v4")
        A(f"s_cmp_ge_u32 s6, {target}")
        A(f"s_cbranch_scc1 {done}")
        A("s_sub_u32 s7, s7, 1")
        A("s_cmp_lg_u32 s7, 0")
        A(f"s_cbranch_scc1 {lp}")
        A.label(done)
    def tagcheck(tagregs):
        for t in tagregs: A(f"v_cmpx_eq_u32 vcc, s36, v{t}")
        A("s_nop 1")
        A("s_cmp_eq_u64 exec, -1")
        A("s_mov_b64 exec, -1")
    def gpoll(loads, tagregs, cap=20000):
        lp = A.uniq("gp"); done = A.uniq("gd")
        A(f"s_mov_b32 s7, {cap}")
        A.label(lp)
        for r in loads: A(r)
        A("s_waitcnt vmcnt(0)")
        tagcheck(tagregs)
        A(f"s_cbranch_scc1 {done}")
        A("s_sub_u32 s7, s7, 1")
        A("s_cmp_lg_u32 s7, 0")
        A(f"s_cbranch_scc1 {lp}")
        A.label(done)
    def mktag():
        A("s_mul_i32 s36, s36, 0x9E3779B1")
        A("s_add_u32 s36, s36, 0x7F4A7C15")
    def write_stamps():
        if not stamps: return
        n = 14
        A("s_waitcnt lgkmcnt(0)")
        srd(52, "s34", "s35", WS_SIZE)
        A("s_getreg_b32 s92, hwreg(HW_REG_XCC_ID)")
        for i in range(n): A(f"v_mov_b32 v{100+i}, s{64+2*i}")
        A("v_mov_b32 v114, s92")
        A("v_mov_b32 v115, s7")
        A("s_lshl_b32 s3, s2, 4")
        A(f"s_add_u32 s3, s3, s93")
        A("s_lshl_b32 s3, s3, 7")
        A(f"s_add_u32 s3, s3, {WS_ST}")
        A("s_mov_b64 exec, 1")
        for i in range(4):
            A(f"buffer_store_dwordx4 v[{100+4*i}:{103+4*i}], v2, s[52:55], s3 offen offset:{16*i}")
        A("s_mov_b64 exec, -1")
    def unpack(dst, src):
        A(f"v_lshlrev_b32 v{dst}, 16, v{src}")
        A(f"v_and_b32 v{dst+1}, 0xffff0000, v{src}")
    DPPM = "row_mask:0xf bank_mask:0xf"
    def dpp_red(op, regs, modes):
        for mode in modes:
            A("s_nop 1")
            for r in regs: A(f"{op}_dpp v{r}, v{r}, v{r} {mode} {DPPM}")
    def swap_red(op, regs, tmp):
        for sw in ["v_permlane16_swap_b32", "v_permlane32_swap_b32"]:
            for k, r in enumerate(regs): A(f"v_mov_b32 v{tmp+k}, v{r}")
            A("s_nop 1" if len(regs) < 2 else "s_nop 0")
            for k, r in enumerate(regs): A(f"{sw} v{r}, v{tmp+k}")
            for k, r in enumerate(regs): A(f"{op} v{r}, v{r}, v{tmp+k}")

    A.L.append(HEADER.rstrip())
    A.L.append(f"; @launch grid=(256,1,1) block=(640,1,1) lds={LDS_BYTES}")
    A.L.append('.amdgcn_target "amdgcn-amd-amdhsa--gfx950"')
    A.L.append(".text")
    A.L.append(f".globl {NAME}_kernel")
    A.L.append(".p2align 8")
    A.L.append(f".type {NAME}_kernel,@function")
    A.label(f"{NAME}_kernel")
    if stamps:
        A("s_memrealtime s[64:65]"); st_idx[0] = 1
    A("s_cmp_ge_u32 s2, 256")
    A("s_cbranch_scc1 L_end")
    A("s_load_dwordx16 s[8:23], s[0:1], 0")
    A("s_load_dwordx8 s[24:31], s[0:1], 64")
    A("s_load_dwordx2 s[34:35], s[0:1], 104")
    A("v_lshrrev_b32 v5, 6, v0")
    A("v_and_b32 v1, 63, v0")
    A("v_readfirstlane_b32 s37, v5")
    A("v_mov_b32 v2, 0")
    A("v_mov_b32 v3, 1")
    A("s_and_b32 s38, s2, 7")
    A("s_lshr_b32 s39, s2, 3")
    A("v_lshrrev_b32 v6, 4, v1")
    A("v_and_b32 v7, 15, v1")
    if stamps:
        A("s_mov_b32 s93, s37")
        for i in range(1, 14): A(f"s_mov_b32 s{64+2*i}, 0")
    A("s_cmp_lg_u32 s37, 0")
    A("s_cbranch_scc1 L_notl")
    A("s_lshl_b32 s3, s38, 10")
    A("s_lshl_b32 s4, s39, 5")
    A("s_add_u32 s3, s3, s4")
    A("v_lshrrev_b32 v15, 1, v1")
    A("v_and_b32 v16, 1, v1")
    A("v_lshlrev_b32 v8, 13, v15")
    A("v_lshl_add_u32 v8, v16, 4, v8")
    A("v_lshlrev_b32 v9, 4, v1")
    A(f"s_movk_i32 m0, {L_WQ:#x}")
    A("s_waitcnt lgkmcnt(0)")
    srd_off(40, 14, "s3", 511 * 8192 + 32)
    loads = []
    for i in range(16):
        pre = [] if i == 0 else ["s_addk_i32 m0, 0x400", f"s_mov_b32 s4, {i*32*8192}"]
        loads.append((pre, f"buffer_load_dwordx4 v8, s[40:43], {'s4' if i else '0'} offen {nt} lds"))
    def srd_l(d, lo, hi, n): return [f"s_mov_b32 s{d}, {lo}", f"s_mov_b32 s{d+1}, {hi}", f"s_mov_b32 s{d+2}, {n}", f"s_mov_b32 s{d+3}, 0x20000"]
    def srd_off_l(d, p, off, n): return [f"s_add_u32 s{d}, s{p}, {off}", f"s_addc_u32 s{d+1}, s{p+1}, 0", f"s_mov_b32 s{d+2}, {n}", f"s_mov_b32 s{d+3}, 0x20000"]
    loads.append(([f"s_movk_i32 m0, {L_X:#x}"] + srd_l(44, "s8", "s9", 2048), "buffer_load_dwordx4 v9, s[44:47], 0 offen lds"))
    loads.append(([], "buffer_load_dwordx4 v9, s[44:47], 0 offen offset:1024 lds"))
    NQ = len(loads)
    kvset = ["s_lshr_b32 s3, s39, 4", "s_lshl_b32 s3, s3, 24", "s_lshl_b32 s4, s38, 21", "s_add_u32 s3, s3, s4",
             "s_and_b32 s4, s39, 15", "s_lshl_b32 s4, s4, 15", "s_add_u32 s3, s3, s4", "s_add_u32 s3, s3, 0x180000"]
    kvset += srd_off_l(40, 10, "s3", 32768) + srd_off_l(44, 12, "s3", 32768)
    kvset += ["v_xor_b32 v14, v7, v6", "v_lshlrev_b32 v14, 4, v14", "v_lshl_add_u32 v10, v6, 8, v14",
              "v_xor_b32 v11, 64, v10", "v_xor_b32 v12, 128, v10", "v_xor_b32 v13, 192, v10",
              "v_lshlrev_b32 v14, 10, v6", "v_lshl_add_u32 v14, v7, 4, v14"]
    for j in range(32):
        pre = kvset if j == 0 else []
        if j % 4 == 0:
            pre = pre + [f"s_mov_b32 m0, {L_K + (j>>2)*4096:#x}", f"s_mov_b32 s4, {(j>>2)*4096}"]
        loads.append((pre, f"buffer_load_dwordx4 v{10+(j&3)}, s[40:43], s4 offen offset:{(j&3)*1024} {nt} lds"))
    NK = len(loads)
    for st in range(8):
        for v in range(4):
            pre = [f"s_mov_b32 m0, {L_V + v*8192 + st*1024:#x}", f"s_mov_b32 s4, {v*8192 + (st>>2)*4096 + (st&3)*256}"]
            loads.append((pre, f"buffer_load_dwordx4 v14, s[44:47], s4 offen {nt} lds"))
    NV = len(loads)
    NV1 = NK + 4 * VSPLIT
    w1set = ["s_and_b32 s3, s39, 1", f"s_mul_i32 s3, s3, {256*3584}", "s_mul_i32 s4, s38, 448", "s_add_u32 s3, s3, s4",
             "s_lshr_b32 s4, s39, 1", "s_lshl_b32 s4, s4, 5", "s_add_u32 s3, s3, s4"]
    w1set += srd_off_l(48, 20, "s3", 255*3584 + 32)
    w1set += ["s_cmp_ge_u32 s39, 28", "s_cselect_b32 s50, 0, s50",
              "v_mul_u32_u24 v8, 3584, v15", "v_lshl_add_u32 v8, v16, 4, v8"]
    for i in range(8):
        pre = w1set if i == 0 else []
        pre = pre + [f"s_mov_b32 m0, {L_W1 + i*1024:#x}", f"s_mov_b32 s4, {i*32*3584}"]
        loads.append((pre, f"buffer_load_dwordx4 v8, s[48:51], s4 offen {nt} lds"))
    NW1 = len(loads)
    woset = ["s_lshl_b32 s3, s38, 19", "s_lshr_b32 s4, s39, 2", "s_lshl_b32 s4, s4, 16", "s_add_u32 s3, s3, s4",
             "s_and_b32 s4, s39, 3", "s_lshl_b32 s4, s4, 8", "s_add_u32 s3, s3, s4"] + srd_off_l(56, 16, "s3", 63*1024 + 256)
    for j in range(16):
        pre = woset if j == 0 else []
        pre = pre + [f"s_mov_b32 m0, {L_WO + j*1024:#x}", f"s_mov_b32 s4, {j*4096}"]
        loads.append((pre, f"buffer_load_dwordx4 v14, s[56:59], s4 offen {nt} lds"))
    w2set = ["s_mul_i32 s3, s38, 224", "s_lshr_b32 s4, s39, 2", "s_mul_i32 s4, s4, 28", "s_add_u32 s3, s3, s4", "s_lshl_b32 s3, s3, 10",
             "s_and_b32 s4, s39, 3", "s_lshl_b32 s4, s4, 8", "s_add_u32 s3, s3, s4"] + srd_off_l(60, 24, "s3", 27*1024 + 256)
    for j in range(8):
        pre = w2set if j == 0 else []
        pre = pre + [f"s_mov_b32 m0, {L_W2 + j*1024:#x}", f"s_mov_b32 s4, {j*4096}"]
        loads.append((pre, f"buffer_load_dwordx4 v14, s[60:63], s4 offen {nt} lds"))
    NALL = len(loads)
    thresholds = [NK, NV1, NV, NW1, NALL]
    landed = 0; ti = 0
    def prog(l):
        nonlocal ti
        hit = None
        while ti < len(thresholds) and thresholds[ti] <= l:
            hit = thresholds[ti]; ti += 1
        if hit is not None:
            A(f"v_mov_b32 v17, {hit}")
            A("s_mov_b64 exec, 1")
            A(f"ds_write_b32 v2, v17 offset:{F_PR}")
            A("s_mov_b64 exec, -1")
            stamp()
    for i, (pre, ld) in enumerate(loads):
        for p in pre: A(p)
        if i == NQ + KPRE:
            stamp()
            A(f"s_waitcnt vmcnt({KPRE})")
            stamp()
            A("s_barrier")
            landed = NQ
        w = WIN if i < NV else WIN2
        if i > NQ + KPRE and i - landed >= w:
            A(f"s_waitcnt vmcnt({w-1})")
            landed = i - w + 1
            prog(landed)
        A(ld)
    for t in thresholds:
        if t > landed:
            A(f"s_waitcnt vmcnt({NALL - t})")
            landed = t
            prog(landed)
    write_stamps()
    A("s_endpgm")

    A.label("L_notl")
    A("s_cmp_lg_u32 s37, 9")
    A("s_cbranch_scc1 L_notr")
    A("s_getpc_b64 s[48:49]")
    A.label("L_pc")
    A(f"s_sub_u32 s48, s48, L_pc-{NAME}_kernel")
    A("s_subb_u32 s49, s49, 0")
    A("v_lshlrev_b32 v15, 7, v1")
    A(f"v_min_u32 v16, L_end-{NAME}_kernel, v15")
    A("global_load_dword v60, v16, s[48:49]")
    A("v_add_u32 v15, 0x2000, v15")
    A(f"v_min_u32 v16, L_end-{NAME}_kernel, v15")
    A("global_load_dword v61, v16, s[48:49]")
    A("v_lshlrev_b32 v8, 2, v1")
    A("s_mov_b64 exec, 0xffff")
    A("ds_write_b32 v8, v2")
    A("s_mov_b64 exec, -1")
    A("s_branch L_rrole")
    A.label("L_notr")
    A("s_waitcnt lgkmcnt(0)")
    A("s_load_dword s36, s[34:35], 0")
    srd(52, "s34", "s35", WS_SIZE)
    A("s_cmp_ge_u32 s37, 5")
    A("s_cbranch_scc1 L_kv")

    stamp_reset(1)
    A("s_sub_u32 s37, s37, 1")
    A("v_and_b32 v10, 1, v1")
    A("v_lshlrev_b32 v10, 10, v10")
    A("v_lshl_add_u32 v10, v6, 4, v10")
    A("s_lshl_b32 s4, s37, 8")
    A("v_add_u32 v11, s4, v10")
    A("v_lshlrev_b32 v12, 3, v7")
    A("v_lshl_add_u32 v12, v6, 8, v12")
    A("s_lshl_b32 s4, s37, 12")
    A("v_add_u32 v13, s4, v12")
    A("s_lshl_b32 s4, s37, 7")
    A("v_lshlrev_b32 v15, 3, v7")
    A("v_add_u32 v15, s4, v15")
    A("v_and_b32 v62, 7, v1")
    A("v_lshlrev_b32 v62, 4, v62")
    A("v_bfe_u32 v63, v1, 3, 1")
    A("v_lshl_add_u32 v62, v63, 2, v62")
    A("s_lshl_b32 s3, s38, 12")
    A("s_lshl_b32 s4, s39, 6")
    A("s_add_u32 s3, s3, s4")
    A(f"s_add_u32 s3, s3, {WS_QP}")
    A("v_and_b32 v60, 7, v1")
    A("v_lshlrev_b32 v60, 3, v60")
    A("v_lshl_add_u32 v60, v63, 11, v60")
    A("s_waitcnt lgkmcnt(0)")
    mktag()
    A("v_mov_b32 v33, s36")
    XA = 16; WB = 36; DQ = 52
    A("s_barrier")
    stamp()
    for i in range(4):
        A(f"ds_read_b128 v[{XA+4*i}:{XA+4*i+3}], v11 offset:{L_X+64*i}")
        A(f"ds_read_b64_tr_b16 v[{WB+4*i}:{WB+4*i+1}], v13 offset:{L_WQ+1024*i}")
        A(f"ds_read_b64_tr_b16 v[{WB+4*i+2}:{WB+4*i+3}], v13 offset:{L_WQ+1024*i+128}")
    for i in range(4):
        A(f"s_waitcnt lgkmcnt({0 if stamps else 9-3*i})")
        c = "0" if i == 0 else f"v[{DQ}:{DQ+3}]"
        A(f"v_mfma_f32_16x16x32_bf16 v[{DQ}:{DQ+3}], v[{XA+4*i}:{XA+4*i+3}], v[{WB+4*i}:{WB+4*i+3}], {c}")
    A("s_nop 6")
    A("s_mov_b64 exec, 0xffff")
    A(f"ds_write_b64 v15, v[{DQ}:{DQ+1}] offset:{L_QRED}")
    A("s_mov_b64 exec, 1")
    A(f"ds_add_u32 v2, v3 offset:{F_QR}")
    A("s_mov_b64 exec, -1")
    A("s_cmp_lg_u32 s37, 0")
    A("s_cbranch_scc1 L_noqpub")
    lds_wait(F_QR, 4, [x for w in range(4) for x in (f"ds_read_b32 v{24+2*w}, v62 offset:{L_QRED+128*w}", f"ds_read_b32 v{25+2*w}, v62 offset:{L_QRED+128*w+8}")])
    A("v_add_f32 v32, v24, v26"); A("v_add_f32 v34, v25, v27")
    A("v_add_f32 v28, v28, v30"); A("v_add_f32 v29, v29, v31")
    A("v_add_f32 v32, v32, v28"); A("v_add_f32 v34, v34, v29")
    A("v_cvt_pk_bf16_f32 v32, v32, v34")
    A("s_mov_b64 exec, 0xffff")
    A("buffer_store_dwordx2 v[32:33], v60, s[52:55], s3 offen sc1")
    A("s_mov_b64 exec, 1")
    A(f"ds_add_u32 v2, v3 offset:{F_QP}")
    A("s_mov_b64 exec, -1")
    A.label("L_noqpub")
    stamp()
    A("s_and_b32 s3, s39, 1")
    A("s_lshl_b32 s3, s3, 9")
    A("s_lshl_b32 s4, s37, 7")
    A("s_add_u32 s3, s3, s4")
    A("v_add_u32 v11, s3, v10")
    A("s_lshl_b32 s4, s37, 11")
    A(f"s_add_u32 s4, s4, {L_W1}")
    A("v_add_u32 v13, s4, v12")
    A(f"ds_read_b128 v[16:19], v11 offset:{L_X}")
    A(f"ds_read_b128 v[20:23], v11 offset:{L_X+64}")
    A("s_mul_i32 s62, s38, 7168")
    A("s_lshr_b32 s4, s39, 1")
    A("s_lshl_b32 s4, s4, 8")
    A("s_add_u32 s62, s62, s4")
    A("s_and_b32 s4, s39, 1")
    A("s_lshl_b32 s4, s4, 3")
    A("s_add_u32 s62, s62, s4")
    A(f"s_add_u32 s62, s62, {WS_HP}")
    A("v_mul_u32_u24 v71, 3584, v6")
    A("v_lshl_add_u32 v71, v7, 4, v71")
    A("v_lshlrev_b32 v72, 3, v7")
    A("v_and_b32 v31, 1, v6")
    A("v_lshl_add_u32 v72, v31, 2, v72")
    A("v_lshlrev_b32 v64, 12, v6")
    A("v_lshl_add_u32 v64, v7, 4, v64")
    A("s_lshl_b32 s56, s38, 17")
    A("s_lshr_b32 s4, s37, 1")
    A("s_lshl_b32 s4, s4, 16")
    A("s_add_u32 s56, s56, s4")
    A("s_lshr_b32 s4, s39, 2")
    A("s_lshl_b32 s4, s4, 9")
    A("s_add_u32 s56, s56, s4")
    A("s_and_b32 s4, s37, 1")
    A("s_lshl_b32 s4, s4, 8")
    A("s_add_u32 s56, s56, s4")
    A(f"s_add_u32 s56, s56, {WS_OP}")
    A("s_add_u32 s57, s56, 16384")
    A("s_add_u32 s58, s56, 32768")
    A("s_add_u32 s59, s56, 49152")
    A("v_lshlrev_b32 v65, 2, v6")
    A("v_xor_b32 v65, v65, v7")
    A("v_lshlrev_b32 v65, 4, v65")
    A("s_lshl_b32 s60, s38, 11")
    A("s_lshr_b32 s4, s37, 1")
    A("s_lshl_b32 s4, s4, 10")
    A("s_add_u32 s60, s60, s4")
    A("s_lshr_b32 s4, s39, 3")
    A("s_lshl_b32 s4, s4, 8")
    A("s_add_u32 s60, s60, s4")
    A(f"s_add_u32 s60, s60, {WS_ML}")
    A("s_lshl_b32 s4, s37, 6")
    A("v_lshlrev_b32 v66, 2, v7")
    A("v_add_u32 v66, s4, v66")
    A("v_and_b32 v67, 1, v1")
    A("v_lshlrev_b32 v68, 6, v67")
    A("v_lshl_add_u32 v68, v6, 4, v68")
    A("v_lshlrev_b32 v67, 7, v67")
    A("v_lshl_add_u32 v67, v6, 4, v67")
    A("v_lshrrev_b32 v69, 2, v7")
    A("v_lshl_add_u32 v69, v6, 3, v69")
    A("v_lshlrev_b32 v69, 8, v69")
    A("v_and_b32 v70, 3, v7")
    A("v_lshl_add_u32 v69, v70, 3, v69")
    A("s_lshl_b32 s4, s37, 6")
    A(f"s_add_u32 s4, s4, {L_WO}")
    A("v_add_u32 v69, s4, v69")
    A("s_lshl_b32 s61, s38, 3")
    A("s_lshr_b32 s4, s39, 2")
    A("s_add_u32 s61, s61, s4")
    A("s_lshl_b32 s61, s61, 13")
    A("s_and_b32 s4, s39, 3")
    A("s_lshl_b32 s4, s4, 10")
    A("s_add_u32 s61, s61, s4")
    A("s_lshl_b32 s4, s37, 8")
    A("s_add_u32 s61, s61, s4")
    A(f"s_add_u32 s61, s61, {WS_CP}")
    A("v_lshlrev_b32 v70, 12, v31")
    A("v_lshrrev_b32 v73, 1, v6")
    A("v_lshl_add_u32 v70, v73, 7, v70")
    A("v_lshl_add_u32 v70, v7, 3, v70")
    A("v_lshlrev_b32 v73, 2, v31")
    A("v_cmp_eq_u32 s[40:41], 1, v31")
    A("v_cmp_lt_u32 s[42:43], 31, v1")
    A("v_mov_b32 v57, s36")
    A("v_mov_b32 v121, s36")
    A("s_cmp_ge_u32 s39, 28")
    A("s_cbranch_scc1 L_noh")
    DH = 52
    lds_wait(F_PR, NW1, [x for i in range(2) for x in (f"ds_read_b64_tr_b16 v[{24+4*i}:{25+4*i}], v13 offset:{1024*i}",
                                                        f"ds_read_b64_tr_b16 v[{26+4*i}:{27+4*i}], v13 offset:{1024*i+128}")])
    stamp()
    A(f"v_mfma_f32_16x16x32_bf16 v[{DH}:{DH+3}], v[16:19], v[24:27], 0")
    A(f"v_mfma_f32_16x16x32_bf16 v[{DH}:{DH+3}], v[20:23], v[28:31], v[{DH}:{DH+3}]")
    A("s_nop 6")
    A("s_mov_b64 exec, 0xffff")
    A(f"ds_write_b64 v15, v[{DH}:{DH+1}] offset:{L_HRED}")
    A("s_mov_b64 exec, 1")
    A(f"ds_add_u32 v2, v3 offset:{F_HR}")
    A("s_mov_b64 exec, -1")
    A("s_cmp_lg_u32 s37, 1")
    A("s_cbranch_scc1 L_noh")
    lds_wait(F_HR, 4, [f"ds_read_b32 v{24+w}, v72 offset:{L_HRED+128*w}" for w in range(4)])
    A("v_add_f32 v56, v24, v25"); A("v_add_f32 v26, v26, v27")
    A("v_add_f32 v56, v56, v26")
    A("s_mov_b64 exec, 0xffffffff")
    A("buffer_store_dwordx2 v[56:57], v71, s[52:55], s62 offen sc1")
    A("s_mov_b64 exec, -1")
    A.label("L_noh")
    stamp_reset(4)
    stamp()
    lds_wait(F_OP, 5, [f"ds_read_b32 v80, v73 offset:{L_G}", f"ds_read_b32 v81, v73 offset:{L_G+8}"])
    stamp()
    O0 = 96; M0 = 112
    loads_c = [f"buffer_load_dwordx4 v[{M0}:{M0+3}], v65, s[52:55], s60 offen sc1"] + \
              [f"buffer_load_dwordx4 v[{O0+4*k}:{O0+4*k+3}], v64, s[52:55], s{56+k} offen sc1" for k in range(4)]
    for l in loads_c: A(l)
    BO = 32
    rd = []
    for i in range(2):
        for n in range(2):
            r = BO + 8*i + 4*n
            rd.append(f"ds_read_b64_tr_b16 v[{r}:{r+1}], v69 offset:{8192*i + 32*n}")
            rd.append(f"ds_read_b64_tr_b16 v[{r+2}:{r+3}], v69 offset:{8192*i + 32*n + 1024}")
    for n in range(2):
        r = BO + 16 + 4*n
        rd.append(f"ds_read_b64_tr_b16 v[{r}:{r+1}], v69 offset:{L_W2-L_WO + 32*n}")
        rd.append(f"ds_read_b64_tr_b16 v[{r+2}:{r+3}], v69 offset:{L_W2-L_WO + 32*n + 1024}")
    lds_wait(F_PR, NALL, rd)
    A("s_waitcnt vmcnt(0)")
    tagcheck([r for r in range(O0 + 1, M0 + 4, 2)])
    A("s_cbranch_scc1 L_cgot")
    gpoll(loads_c, [r for r in range(O0 + 1, M0 + 4, 2)])
    A.label("L_cgot")
    stamp()
    ROW = ["quad_perm:[1,0,3,2]", "quad_perm:[2,3,0,1]", "row_half_mirror", "row_mirror"]
    A(f"v_mov_b32 v24, v{M0}")
    dpp_red("v_max_f32", [24], ROW)
    A(f"v_sub_f32 v25, v{M0}, v24")
    A("v_exp_f32 v25, v25")
    A("s_nop 0")
    A(f"v_mul_f32 v26, v25, v{M0+2}")
    A(f"v_mul_f32_dpp v28, v25, v{O0} row_newbcast:0 {DPPM}")
    A(f"v_mul_f32_dpp v29, v25, v{O0+2} row_newbcast:0 {DPPM}")
    A(f"v_add_f32_dpp v26, v26, v26 {ROW[0]} {DPPM}")
    A(f"v_fmac_f32_dpp v28, v25, v{O0+4} row_newbcast:1 {DPPM}")
    A(f"v_fmac_f32_dpp v29, v25, v{O0+6} row_newbcast:1 {DPPM}")
    A(f"v_add_f32_dpp v26, v26, v26 {ROW[1]} {DPPM}")
    A(f"v_fmac_f32_dpp v28, v25, v{O0+8} row_newbcast:2 {DPPM}")
    A(f"v_fmac_f32_dpp v29, v25, v{O0+10} row_newbcast:2 {DPPM}")
    A(f"v_add_f32_dpp v26, v26, v26 {ROW[2]} {DPPM}")
    A(f"v_fmac_f32_dpp v28, v25, v{O0+12} row_newbcast:3 {DPPM}")
    A(f"v_fmac_f32_dpp v29, v25, v{O0+14} row_newbcast:3 {DPPM}")
    A(f"v_add_f32_dpp v26, v26, v26 {ROW[3]} {DPPM}")
    A("v_rcp_f32 v26, v26")
    swap_red("v_add_f32", [28, 29], 30)
    A("v_mul_f32 v28, v28, v26")
    A("v_mul_f32 v29, v29, v26")
    A("v_cvt_pk_bf16_f32 v28, v28, v29")
    A("s_mov_b64 exec, 0xffff")
    A(f"ds_write_b32 v66, v28 offset:{L_OB}")
    A("s_mov_b64 exec, 1")
    A(f"ds_add_u32 v2, v3 offset:{F_A}")
    A("s_mov_b64 exec, -1")
    lds_wait(F_A, 5, [f"ds_read_b128 v[84:87], v67 offset:{L_OB}", f"ds_read_b128 v[88:91], v67 offset:{L_OB+64}",
                      f"ds_read_b128 v[92:95], v68 offset:{L_HB}"])
    stamp()
    A(f"v_mfma_f32_16x16x32_bf16 v[96:99], v[84:87], v[{BO}:{BO+3}], 0")
    A(f"v_mfma_f32_16x16x32_bf16 v[100:103], v[84:87], v[{BO+4}:{BO+7}], 0")
    A(f"v_mfma_f32_16x16x32_bf16 v[96:99], v[88:91], v[{BO+8}:{BO+11}], v[96:99]")
    A(f"v_mfma_f32_16x16x32_bf16 v[100:103], v[88:91], v[{BO+12}:{BO+15}], v[100:103]")
    A(f"v_mfma_f32_16x16x32_bf16 v[104:107], v[92:95], v[{BO+16}:{BO+19}], 0")
    A(f"v_mfma_f32_16x16x32_bf16 v[108:111], v[92:95], v[{BO+20}:{BO+23}], 0")
    A("s_nop 5")
    A("v_cndmask_b32 v112, v96, v97, s[40:41]")
    A("v_cndmask_b32 v113, v100, v101, s[40:41]")
    A("v_cndmask_b32 v114, v104, v105, s[40:41]")
    A("v_cndmask_b32 v115, v108, v109, s[40:41]")
    A("v_cndmask_b32 v112, v112, v113, s[42:43]")
    A("v_cndmask_b32 v114, v114, v115, s[42:43]")
    A("v_mul_f32 v120, v112, v80")
    A("v_fmac_f32 v120, v114, v81")
    A("buffer_store_dwordx2 v[120:121], v70, s[52:55], s61 offen sc1")
    lds_flag_add(F_CP)
    stamp()
    write_stamps()
    A("s_endpgm")

    A.label("L_kv")
    stamp_reset(1)
    A("s_sub_u32 s37, s37, 5")
    A("v_and_b32 v14, 3, v1")
    A("v_mov_b32 v15, 0xffff")
    A("v_mov_b32 v80, 0xffff0000")
    A("v_cmp_eq_u32 vcc, 0, v14"); A("s_nop 1"); A("v_cndmask_b32 v81, 0, v15, vcc")
    A("v_cmp_eq_u32 vcc, 1, v14"); A("s_nop 1"); A("v_cndmask_b32 v132, v81, v80, vcc")
    A("v_cmp_eq_u32 vcc, 2, v14"); A("s_nop 1"); A("v_cndmask_b32 v81, 0, v15, vcc")
    A("v_cmp_eq_u32 vcc, 3, v14"); A("s_nop 1"); A("v_cndmask_b32 v133, v81, v80, vcc")
    A("v_lshrrev_b32 v14, 2, v7")
    A("v_mul_u32_u24 v14, 272, v14")
    A("v_lshl_add_u32 v14, v6, 4, v14")
    A("v_xor_b32 v12, v7, v6")
    A("v_lshlrev_b32 v12, 4, v12")
    A("v_lshl_add_u32 v134, v7, 8, v12")
    A("s_lshl_b32 s4, s37, 13")
    A(f"s_add_u32 s5, s4, {L_K}")
    A("v_add_u32 v134, s5, v134")
    A("v_xor_b32 v135, 64, v134")
    A("v_xor_b32 v136, 128, v134")
    A("v_xor_b32 v137, 192, v134")
    A(f"s_add_u32 s5, s4, {L_V}")
    A("v_lshlrev_b32 v13, 4, v1")
    A("v_add_u32 v13, s5, v13")
    A("s_lshl_b32 s4, s37, 4")
    A("v_add_u32 v8, s4, v7")
    A("v_and_b32 v9, 12, v7")
    A("s_lshl_b32 s4, s37, 11")
    A("v_lshlrev_b32 v10, 5, v1")
    A("v_add_u32 v10, s4, v10")
    A("s_lshl_b32 s4, s37, 9")
    A("v_lshlrev_b32 v11, 3, v1")
    A("v_add_u32 v11, s4, v11")
    A("s_lshl_b32 s4, s37, 2")
    A("v_mov_b32 v12, s4")
    A("s_lshl_b32 s3, s38, 5")
    A("s_add_u32 s3, s3, s39")
    A("s_lshl_b32 s3, s3, 12")
    A("s_lshl_b32 s4, s37, 10")
    A("s_add_u32 s3, s3, s4")
    A(f"s_add_u32 s3, s3, {WS_OP}")
    A("s_lshr_b32 s4, s39, 4")
    A("s_lshl_b32 s5, s38, 1")
    A("s_add_u32 s5, s5, s4")
    A("s_lshl_b32 s5, s5, 2")
    A("s_add_u32 s5, s5, s37")
    A("s_lshl_b32 s5, s5, 4")
    A("s_and_b32 s4, s39, 3")
    A("s_lshl_b32 s4, s4, 2")
    A("s_add_u32 s5, s5, s4")
    A("s_bfe_u32 s4, s39, 0x20002")
    A("s_add_u32 s5, s5, s4")
    A("s_lshl_b32 s5, s5, 4")
    A(f"s_add_u32 s5, s5, {WS_ML}")
    A("v_lshlrev_b32 v15, 4, v1")
    A("s_waitcnt lgkmcnt(0)")
    mktag()
    A("v_mov_b32 v141, s36"); A("v_mov_b32 v143, s36"); A("v_mov_b32 v139, s36")
    A("s_barrier")
    KR, VR = 16, 48
    lds_wait(F_PR, NK, [])
    stamp()
    for t in range(2):
        for d in range(4):
            A(f"ds_read_b128 v[{KR+16*t+4*d}:{KR+16*t+4*d+3}], v{134+d} offset:{4096*t}")
    QR = 80
    lds_wait(F_Q, 1, [f"ds_read_b128 v[{QR+4*d}:{QR+4*d+3}], v14 offset:{L_Q+64*d}" for d in range(4)])
    stamp()
    SR = 96
    for d in range(4):
        for t in range(2):
            c = "0" if d == 0 else f"v[{SR+4*t}:{SR+4*t+3}]"
            A(f"v_mfma_f32_16x16x32_bf16 v[{SR+4*t}:{SR+4*t+3}], v[{KR+16*t+4*d}:{KR+16*t+4*d+3}], v[{QR+4*d}:{QR+4*d+3}], {c}")
    A("v_mov_b32 v137, s36")
    A("s_nop 6")
    SC = 128 ** -0.5
    if mimic:
        A(f"s_mov_b32 s4, {f2u(SC):#x}")
        for i in range(0, 8, 2): A(f"v_cvt_pk_bf16_f32 v{108+i//2}, v{SR+i}, v{SR+i+1}")
        for i in range(0, 8, 2): unpack(SR+i, 108+i//2)
        for i in range(8): A(f"v_mul_f32 v{SR+i}, s4, v{SR+i}")
        for i in range(0, 8, 2): A(f"v_cvt_pk_bf16_f32 v{108+i//2}, v{SR+i}, v{SR+i+1}")
        for i in range(0, 8, 2): unpack(SR+i, 108+i//2)
        CE = LOG2E
    else:
        CE = LOG2E * SC
    A(f"v_max3_f32 v104, v{SR}, v{SR+1}, v{SR+2}")
    A(f"v_max3_f32 v105, v{SR+3}, v{SR+4}, v{SR+5}")
    A(f"v_max3_f32 v104, v104, v{SR+6}, v{SR+7}")
    A("v_max_f32 v104, v104, v105")
    swap_red("v_max_f32", [104], 105)
    A("s_mov_b64 exec, 0x1111")
    A(f"ds_write_b32 v8, v104 offset:{L_MX}")
    A("s_mov_b64 exec, 1")
    A(f"ds_add_u32 v2, v3 offset:{F_MX}")
    A("s_mov_b64 exec, -1")
    lds_wait(F_MX, 4, [f"ds_read_b32 v{108+w}, v9 offset:{L_MX+16*w}" for w in range(4)])
    A("v_max3_f32 v104, v108, v109, v110")
    A("v_max_f32 v104, v104, v111")
    A(f"s_mov_b32 s4, {f2u(CE):#x}")
    A("v_mul_f32 v104, s4, v104")
    for i in range(8): A(f"v_fma_f32 v{SR+i}, v{SR+i}, s4, -v104")
    for i in range(8): A(f"v_exp_f32 v{SR+i}, v{SR+i}")
    A("s_lshl_b32 s4, s37, 2")
    AR = 108
    for i in range(8): A(f"v_cvt_pk_bf16_f32 v{AR+2*i+1}, v{SR+i}, v{SR+i}")
    for i in range(8):
        A(f"v_and_b32 v{AR+2*i}, v{AR+2*i+1}, v132")
        A(f"v_and_b32 v{AR+2*i+1}, v{AR+2*i+1}, v133")
    A("v_readlane_b32 s62, v104, s4")
    A(f"v_add_f32 v105, v{SR}, v{SR+1}")
    A(f"v_add_f32 v{SR+2}, v{SR+2}, v{SR+3}")
    A(f"v_add_f32 v{SR+4}, v{SR+4}, v{SR+5}")
    A(f"v_add_f32 v{SR+6}, v{SR+6}, v{SR+7}")
    A(f"v_add_f32 v105, v105, v{SR+2}")
    A(f"v_add_f32 v{SR+4}, v{SR+4}, v{SR+6}")
    A(f"v_add_f32 v105, v105, v{SR+4}")
    swap_red("v_add_f32", [105], 106)
    A("v_mov_b32 v136, s62")
    A("s_mov_b64 exec, 0x1111")
    A(f"ds_write_b32 v8, v105 offset:{L_LW}")
    A("s_mov_b64 exec, -1")
    stamp()
    OR_ = 124
    def pv(j):
        c0 = "0" if j == 0 else f"v[{OR_}:{OR_+3}]"
        c1 = "0" if j == 0 else f"v[{OR_+4}:{OR_+7}]"
        A(f"v_mfma_f32_16x16x16_bf16 v[{OR_}:{OR_+3}], v[{AR+2*j}:{AR+2*j+1}], v[{VR+4*j}:{VR+4*j+1}], {c0}")
        A(f"v_mfma_f32_16x16x16_bf16 v[{OR_+4}:{OR_+7}], v[{AR+2*j}:{AR+2*j+1}], v[{VR+4*j+2}:{VR+4*j+3}], {c1}")
    lds_wait(F_PR, NV1, [f"ds_read_b128 v[{VR+4*j}:{VR+4*j+3}], v13 offset:{1024*j}" for j in range(VSPLIT)])
    for j in range(VSPLIT): pv(j)
    lds_wait(F_PR, NV, [f"ds_read_b128 v[{VR+4*j}:{VR+4*j+3}], v13 offset:{1024*j}" for j in range(VSPLIT, 8)])
    stamp()
    for j in range(VSPLIT, 8): pv(j)
    A("s_nop 6")
    A(f"ds_write_b128 v10, v[{OR_}:{OR_+3}] offset:{L_OW}")
    A(f"ds_write_b128 v10, v[{OR_+4}:{OR_+7}] offset:{L_OW+16}")
    lds_flag_add(F_OW)
    rd = [f"ds_read_b64 v[{24+2*w}:{25+2*w}], v11 offset:{L_OW+2048*w}" for w in range(4)]
    rd += [f"ds_read_b32 v{16+w}, v12 offset:{L_LW+16*w}" for w in range(4)]
    lds_wait(F_OW, 4, rd)
    A("v_add_f32 v140, v24, v26"); A("v_add_f32 v142, v25, v27")
    A("v_add_f32 v28, v28, v30"); A("v_add_f32 v29, v29, v31")
    A("v_add_f32 v140, v140, v28"); A("v_add_f32 v142, v142, v29")
    A("buffer_store_dwordx4 v[140:143], v15, s[52:55], s3 offen sc1")
    A("v_add_f32 v138, v16, v17"); A("v_add_f32 v18, v18, v19")
    A("v_add_f32 v138, v138, v18")
    A("s_mov_b64 exec, 1")
    A("buffer_store_dwordx4 v[136:139], v2, s[52:55], s5 offen sc1")
    A(f"ds_add_u32 v2, v3 offset:{F_OP}")
    A("s_mov_b64 exec, -1")
    stamp()
    write_stamps()
    A("s_endpgm")

    A.label("L_rrole")
    stamp_reset(1)
    A("s_waitcnt lgkmcnt(0)")
    A("s_load_dword s36, s[34:35], 0")
    srd(52, "s34", "s35", WS_SIZE)
    srd(48, "s28", "s29", 1024)
    srd(56, "s30", "s31", 2048)
    srd(40, "s22", "s23", 3584)
    srd(44, "s26", "s27", 1024)
    A("v_lshlrev_b32 v15, 4, v1")
    A("buffer_load_dwordx4 v[72:75], v15, s[48:51], 0 offen")
    A("s_lshl_b32 s60, s38, 3")
    A("s_and_b32 s4, s39, 7")
    A("s_add_u32 s60, s60, s4")
    A("s_lshr_b32 s61, s60, 5")
    A("s_and_b32 s60, s60, 31")
    A("s_lshl_b32 s60, s60, 4")
    A("s_lshr_b32 s4, s2, 6")
    A("s_lshl_b32 s4, s4, 2")
    A("s_add_u32 s60, s60, s4")
    A("v_and_b32 v18, 1, v1")
    A("v_lshlrev_b32 v19, 2, v18")
    A("s_lshl_b32 s4, s60, 1")
    A("buffer_load_dword v76, v19, s[44:47], s4 offen")
    A("s_mul_i32 s3, s38, 224")
    A("s_lshr_b32 s4, s39, 2")
    A("s_mul_i32 s5, s4, 28")
    A("s_add_u32 s3, s3, s5")
    A("s_lshl_b32 s3, s3, 1")
    A("v_and_b32 v20, 31, v1")
    A("v_min_u32 v21, 27, v20")
    A("v_lshlrev_b32 v22, 1, v21")
    A("buffer_load_ushort v77, v22, s[40:43], s3 offen")
    A("v_lshrrev_b32 v23, 5, v1")
    A("v_mul_u32_u24 v78, 3584, v23")
    A("v_lshl_add_u32 v78, v21, 4, v78")
    A("s_mul_i32 s62, s38, 7168")
    A("s_lshl_b32 s5, s5, 4")
    A("s_add_u32 s62, s62, s5")
    A(f"s_add_u32 s62, s62, {WS_HP}")
    A("v_lshlrev_b32 v79, 1, v1")
    A("v_cmp_gt_u32 s[42:43], 28, v20")
    A("s_lshl_b32 s3, s38, 12")
    A("s_lshr_b32 s4, s39, 4")
    A("s_lshl_b32 s4, s4, 11")
    A("s_add_u32 s3, s3, s4")
    A(f"s_add_u32 s3, s3, {WS_QP}")
    A("v_mul_u32_u24 v16, 272, v23")
    A("v_lshl_add_u32 v16, v20, 3, v16")
    A("s_waitcnt lgkmcnt(0)")
    mktag()
    A("s_barrier")
    lds_wait(F_QP, 1, [f"ds_read_b128 v[64:67], v15 offset:{L_X}", f"ds_read_b128 v[68:71], v15 offset:{L_X+1024}"])
    stamp()
    def qload(k):
        b = 24 + 8 * k
        A(f"buffer_load_dwordx4 v[{b}:{b+3}], v15, s[52:55], s3 offen sc1")
        A(f"buffer_load_dwordx4 v[{b+4}:{b+7}], v15, s[52:55], s3 offen offset:1024 sc1")
    A("s_mov_b32 s7, 20000")
    for k in range(QSETS - 1):
        qload(k)
        if QSLEEP: A(f"s_sleep {QSLEEP}")
    A.label("L_qpoll")
    for k in range(QSETS):
        qload((k + QSETS - 1) % QSETS)
        A(f"s_waitcnt vmcnt({2*(QSETS-1)})")
        b = 24 + 8 * k
        tagcheck([b+1, b+3, b+5, b+7])
        A(f"s_cbranch_scc1 L_qgot{k}")
    A("s_sub_u32 s7, s7, 1")
    A("s_cmp_lg_u32 s7, 0")
    A("s_cbranch_scc1 L_qpoll")
    for k in range(QSETS):
        b = 24 + 8 * k
        A.label(f"L_qgot{k}")
        A(f"v_mov_b32 v{b+1}, v{b+2}")
        A(f"v_mov_b32 v{b+5}, v{b+6}")
        A(f"ds_write_b64 v16, v[{b}:{b+1}] offset:{L_Q}")
        A(f"ds_write_b64 v16, v[{b+4}:{b+5}] offset:{L_Q+544}")
        if k < QSETS - 1: A("s_branch L_qdone")
    A.label("L_qdone")
    lds_flag_add(F_Q)
    stamp()
    GW = 84; T = 92; P = 100
    for i in range(4): unpack(GW + 2*i, 72 + i)
    for bb in range(2):
        for i in range(4): unpack(T + 2*i, 64 + 4*bb + i)
        for i in range(8): A(f"v_mul_f32 v{T+i}, v{T+i}, v{GW+i}")
        for i in range(4): A(f"v_cvt_pk_bf16_f32 v{P+i}, v{T+2*i}, v{T+2*i+1}")
        for i in range(4): unpack(T + 2*i, P + i)
        for i in range(4): A(f"v_add_f32 v{T+2*i}, v{T+2*i}, v{T+2*i+1}")
        A(f"v_add_f32 v{T}, v{T}, v{T+2}"); A(f"v_add_f32 v{T+4}, v{T+4}, v{T+6}")
        A(f"v_add_f32 v{104+bb}, v{T}, v{T+4}")
    dpp_red("v_add_f32", [104, 105], ROW)
    swap_red("v_add_f32", [104, 105], 106)
    A("v_cmp_eq_u32 vcc, 1, v18")
    A("s_nop 1")
    A("v_cndmask_b32 v104, v104, v105, vcc")
    A("v_cvt_pk_bf16_f32 v104, v104, v104")
    A("v_and_b32 v104, 0xffff0000, v104")
    A(f"v_mul_f32 v104, {f2u(-LOG2E):#x}, v104")
    A("v_exp_f32 v104, v104")
    A("s_nop 0")
    A("v_add_f32 v104, 1.0, v104")
    A("v_rcp_f32 v104, v104")
    A("s_nop 0")
    A("v_cvt_pk_bf16_f32 v104, v104, v104")
    A("v_and_b32 v80, 0xffff0000, v104")
    A("v_sub_f32 v81, 1.0, v80")
    A("v_cvt_pk_bf16_f32 v81, v81, v81")
    A("v_and_b32 v81, 0xffff0000, v81")
    A("s_mov_b64 exec, 3")
    A(f"ds_write_b32 v8, v80 offset:{L_G}")
    A(f"ds_write_b32 v8, v81 offset:{L_G+8}")
    A("s_mov_b64 exec, 1")
    A(f"ds_add_u32 v2, v3 offset:{F_OP}")
    A("s_mov_b64 exec, -1")
    A("v_readlane_b32 s5, v81, s61")
    unpack(82, 76)
    A("s_nop 0")
    A("v_mul_f32 v82, s5, v82"); A("v_mul_f32 v83, s5, v83")
    A("v_lshlrev_b32 v77, 16, v77")
    A("s_lshl_b32 s3, s61, 12")
    A("s_lshl_b32 s4, s60, 3")
    A("s_add_u32 s3, s3, s4")
    A(f"s_add_u32 s3, s3, {WS_CP}")
    A("s_add_u32 s63, s3, 262144")
    A("v_lshrrev_b32 v60, 1, v1")
    A("v_lshlrev_b32 v60, 13, v60")
    A("v_lshl_add_u32 v60, v18, 4, v60")
    A("s_lshl_b32 s61, s61, 10")
    A("s_lshl_b32 s60, s60, 1")
    A("s_add_u32 s60, s60, s61")
    stamp()
    lds_wait(F_OP, 5, [])
    gpoll(["buffer_load_dwordx4 v[24:27], v78, s[52:55], s62 offen sc1"], [25, 27])
    stamp()
    kk = 2 * math.sqrt(2 / math.pi) * LOG2E
    A("v_add_f32 v24, v24, v26")
    A(f"s_mov_b32 s4, {f2u(0.044715):#x}")
    A("v_cvt_pk_bf16_f32 v24, v24, v24")
    A("v_and_b32 v24, 0xffff0000, v24")
    A("v_add_f32 v24, v24, v77")
    A("v_cvt_pk_bf16_f32 v24, v24, v24")
    A("v_and_b32 v24, 0xffff0000, v24")
    A("v_mul_f32 v25, v24, v24")
    A("v_fma_f32 v25, v25, s4, 1.0")
    A("v_mul_f32 v25, v25, v24")
    A(f"v_mul_f32 v25, {f2u(-kk):#x}, v25")
    A("v_exp_f32 v25, v25")
    A("s_nop 0")
    A("v_add_f32 v25, 1.0, v25")
    A("v_rcp_f32 v25, v25")
    A("s_nop 0")
    A("v_mul_f32 v25, v25, v24")
    A("v_cvt_pk_bf16_f32 v25, v25, v25")
    A("v_cndmask_b32 v25, 0, v25, s[42:43]")
    A(f"ds_write_b16 v79, v25 offset:{L_HB}")
    lds_flag_add(F_A)
    lds_wait(F_CP, 4, [])
    stamp()
    gpoll(["buffer_load_dwordx4 v[24:27], v60, s[52:55], s3 offen sc1",
           "buffer_load_dwordx4 v[28:31], v60, s[52:55], s63 offen sc1"], [25, 27, 29, 31])
    stamp()
    A("v_add_f32 v24, v24, v28"); A("v_add_f32 v26, v26, v30")
    dpp_red("v_add_f32", [24, 26], ["quad_perm:[2,3,0,1]", "row_ror:4", "row_ror:8"])
    swap_red("v_add_f32", [24, 26], 32)
    A("v_add_f32 v24, v24, v82"); A("v_add_f32 v26, v26, v83")
    A("v_cvt_pk_bf16_f32 v24, v24, v26")
    A("s_mov_b64 exec, 3")
    A("buffer_store_dword v24, v19, s[56:59], s60 offen")
    A("s_cmp_lg_u32 s2, 0")
    A("s_cbranch_scc1 L_noep")
    A("s_mov_b64 exec, 1")
    A("v_mov_b32 v26, s36")
    A("buffer_store_dword v26, v2, s[52:55], 0 offen sc1")
    A.label("L_noep")
    A("s_mov_b64 exec, -1")
    stamp()
    write_stamps()
    A.label("L_end")
    A("s_endpgm")
    A.L.append('.section .rodata,"a"')
    A.L.append(".p2align 6")
    A.L.append(f".amdhsa_kernel {NAME}_kernel")
    A.L.append("  .amdhsa_next_free_vgpr 144")
    A.L.append("  .amdhsa_next_free_sgpr 96")
    A.L.append("  .amdhsa_accum_offset 144")
    A.L.append("  .amdhsa_group_segment_fixed_size 0")
    A.L.append("  .amdhsa_kernarg_size 112")
    A.L.append("  .amdhsa_user_sgpr_count 2")
    A.L.append("  .amdhsa_user_sgpr_kernarg_segment_ptr 1")
    A.L.append("  .amdhsa_system_sgpr_workgroup_id_x 1")
    A.L.append(".end_amdhsa_kernel")
    open(out, "w").write("\n".join(A.L) + "\n")

if __name__ == "__main__":
    gen("v3.s", stamps=False)
    gen("v3_st.s", stamps=True)
```

```python
import sys, math, struct, json
NAME = "gated_mix__sliding_block_cached__dense_activation_gelu__decode"
HEADER = open("cdna_kernels/" + NAME + ".s.ref").read().split("; Override launch")[0]

WS_QP = 0x10000
WS_HP = 0x30000
WS_ML = 0x60000
WS_OP = 0x80000
WS_CP = 0x120000
OPS = 2048 + 128
CPS = 4096 + 128
HPS = 2048 + 128
DB = 0x400000
WS_ST = 0x800000
WS_SIZE = 0x1000000

F_Q, F_NL, F_PR, F_MX, F_P, F_OP, F_A, F_H, F_CP, F_G = 0, 4, 8, 12, 16, 20, 24, 28, 32, 36
L_G = 0x40
L_OB = 0x80
L_HB = 0x180
L_Q = 0x200
L_MX = 0x680
L_LW = 0x6C0
L_P = 0x700
L_X = 0xC00
L_Z = 0x1D400
L_WQ = 0x1400
L_K = 0x5400
L_V = 0xD400
L_W1 = 0x15400
L_WO = 0x17400
L_W2 = 0x1B400
LDS_BYTES = 0x1D500

LOG2E = 1.4426950408889634
def f2u(f): return struct.unpack("<I", struct.pack("<f", f))[0]
DPPM = "row_mask:0xf bank_mask:0xf"
ROW = ["quad_perm:[1,0,3,2]", "quad_perm:[2,3,0,1]", "row_half_mirror", "row_mirror"]


DOC = """;
; Design (generated by a script of mine; one persistent launch, 256 workgroups x 10 waves, one workgroup per CU):
;   wave 0      loader: streams x, wq / w1 / w2 / wo tiles and 128 keys of K and V into LDS (LDS-DMA), a fixed number of
;   Hand-offs between workgroups go through d_ws as 16-byte granules {4 x 24-bit float, tag}; the tag is derived from an
;   Every wait is bounded."""

class G:
    def __init__(self): self.L = []; self.n = 0
    def __call__(self, *ss):
        for s in ss: self.L.append("    " + s)
    def label(self, n): self.L.append(n + ":")
    def uniq(self, p): self.n += 1; return f"L_{p}_{self.n}"

def gen(out, stamps=False, WIN=24, KPRE=8, nt="nt", mimic=True, PQ=0, PH=24, PM=8, SLEEP=1, FB=64, PTF="sc1",
        ORDER="w1 K w2 V wo", WSCHED=None, PO=8, QN=3, QSL=10, TLB=True, CPT=None, CPD=0, CPW=4, QD=28, CN=3, CSL=3, PQS=None, ON=1, PROBE=None, WOP=True, CW=None, CPRE=False, CPR=None, CACK=False, LATEB=False, RND=True, PSPEC=True, ILV=0, RPP=None, ROT=None, VROT=0, IXOR=0, TLB2=False, QMAP=0, SLIDE=None, SX=False, SWZ=True, TIGHT=False, FLATE=False):
    A = G()
    CAPG = 20000 if stamps else 400000
    st_idx = [0]
    def stamp(final=False):
        if stamps:
            i = st_idx[0]; st_idx[0] += 1
            assert i < 14
            if stamps == "min" and not final: return
            A(f"s_memrealtime s[{64+2*i}:{65+2*i}]")
    def stamp_reset(n): st_idx[0] = n
    def lg(n): return f"s_waitcnt lgkmcnt({0 if stamps is True else n})"
    def srd_l(d, lo, hi, n): return [f"s_mov_b32 s{d}, {lo}", f"s_mov_b32 s{d+1}, {hi}", f"s_mov_b32 s{d+2}, {n}", f"s_mov_b32 s{d+3}, 0x20000"]
    def srd_off_l(d, p, off, n): return [f"s_add_u32 s{d}, s{p}, {off}", f"s_addc_u32 s{d+1}, s{p+1}, 0", f"s_mov_b32 s{d+2}, {n}", f"s_mov_b32 s{d+3}, 0x20000"]
    def srd(*a): A(*srd_l(*a))
    def flag_add(off): A("s_mov_b64 exec, 1", f"ds_add_u32 v2, v3 offset:{off}", "s_mov_b64 exec, -1")
    def lds_wait(off, target, spec=(), cap=2000000, sleep=0):
        lp = A.uniq("lw"); done = A.uniq("ld")
        A(f"s_mov_b32 s7, {cap}")
        A.label(lp)
        A(f"ds_read_b32 v4, v2 offset:{off}", *spec)
        A("s_waitcnt lgkmcnt(0)", "v_readfirstlane_b32 s6, v4", f"s_cmp_ge_u32 s6, {target}", f"s_cbranch_scc1 {done}")
        if sleep: A(f"s_sleep {sleep}")
        A("s_sub_u32 s7, s7, 1", "s_cmp_lg_u32 s7, 0", f"s_cbranch_scc1 {lp}")
        A.label(done)
    def tagcheck(tagregs, tag="s36"):
        for t in tagregs: A(f"v_cmpx_eq_u32 vcc, {tag}, v{t}")
        A("s_nop 1", "s_cmp_eq_u64 exec, -1", "s_mov_b64 exec, -1")
    def mpoll(loads, soffs=(), between=None, cap=CAPG, loose=False, tag="s36", issued=False):
        lp = A.uniq("mp"); done = A.uniq("md"); nt_ = A.uniq("mn")
        if not issued:
            for l, _ in loads: A(l)
        if between: between()
        A(f"s_mov_b32 s7, {cap}", "s_waitcnt vmcnt(0)")
        tagcheck([t for _, t in loads], tag)
        A(f"s_cbranch_scc1 {done}")
        A.label(lp)
        if soffs:
            A(f"s_cmp_gt_u32 s7, {cap - FB}", f"s_cbranch_scc1 {nt_}")
            for r in soffs: A(f"s_xor_b32 {r}, {r}, {DB:#x}")
            A.label(nt_)
        A("s_mov_b32 s6, 0")
        for l, t in loads:
            sk = A.uniq("ms")
            if loose: A(f"v_xor_b32 v5, s36, v{t}", "v_cmp_lt_u32 vcc, 15, v5")
            else: A(f"v_cmp_ne_u32 vcc, s36, v{t}")
            A("s_nop 0", "s_mov_b64 exec, vcc", f"s_cbranch_execz {sk}", l, "s_mov_b32 s6, 1")
            A.label(sk)
            A("s_mov_b64 exec, -1")
        A("s_cmp_eq_u32 s6, 0", f"s_cbranch_scc1 {done}", "s_waitcnt vmcnt(0)",
          "s_sub_u32 s7, s7, 1", "s_cmp_lg_u32 s7, 0", f"s_cbranch_scc1 {lp}")
        A.label(done)
    def mktag(): A("s_mul_i32 s36, s36, 0x9E3779B1", "s_add_u32 s36, s36, 0x7F4A7C15")
    def selregs():
        A("s_mov_b32 s44, 0x05030201", "s_mov_b32 s45, 0x06050302", "s_mov_b32 s46, 0x07060503",
          "s_mov_b32 s47, 0x0504030c", "s_mov_b32 s48, 0x0403020c")
    def round24(a):
        if RND:
            for i in range(4): A(f"v_add_u32 v{a+i}, 0x80, v{a+i}")
    def pack24(dst, a): A(f"v_perm_b32 v{dst}, v{a+1}, v{a}, s44", f"v_perm_b32 v{dst+1}, v{a+2}, v{a+1}, s45", f"v_perm_b32 v{dst+2}, v{a+3}, v{a+2}, s46")
    def unpack24(d, b):
        A(f"v_lshlrev_b32 v{d}, 8, v{b}", f"v_perm_b32 v{d+1}, v{b+1}, v{b}, s47", f"v_perm_b32 v{d+2}, v{b+2}, v{b+1}, s48",
          f"v_and_b32 v{d+3}, 0xffffff00, v{b+2}")
    def tred4(r):
        A("s_nop 0", f"v_permlane32_swap_b32 v{r}, v{r+2}", f"v_permlane32_swap_b32 v{r+1}, v{r+3}",
          f"v_add_f32 v{r}, v{r}, v{r+2}", f"v_add_f32 v{r+1}, v{r+1}, v{r+3}", "s_nop 1",
          f"v_permlane16_swap_b32 v{r}, v{r+1}", f"v_add_f32 v{r}, v{r}, v{r+1}")
    def write_stamps():
        if not stamps: return
        A("s_waitcnt lgkmcnt(0)")
        srd(52, "s34", "s35", WS_SIZE)
        A("s_getreg_b32 s92, hwreg(HW_REG_XCC_ID)")
        for i in range(14): A(f"v_mov_b32 v{100+i}, s{64+2*i}")
        A("v_mov_b32 v114, s92", "v_mov_b32 v115, s7", "s_lshl_b32 s3, s2, 4", "s_add_u32 s3, s3, s93", "s_lshl_b32 s3, s3, 7",
          f"s_add_u32 s3, s3, {WS_ST}", "s_mov_b64 exec, 1")
        for i in range(4): A(f"buffer_store_dwordx4 v[{100+4*i}:{103+4*i}], v2, s[52:55], s3 offen offset:{16*i}")
        A("s_mov_b64 exec, -1")
    def unpack(dst, src): A(f"v_lshlrev_b32 v{dst}, 16, v{src}", f"v_and_b32 v{dst+1}, 0xffff0000, v{src}")
    def dpp_red(op, regs, modes):
        for mode in modes:
            A("s_nop 1" if len(regs) < 2 else "s_nop 0")
            for r in regs: A(f"{op}_dpp v{r}, v{r}, v{r} {mode} {DPPM}")
    def swap_red(op, regs, tmp, which=("v_permlane16_swap_b32", "v_permlane32_swap_b32")):
        for sw in which:
            for k, r in enumerate(regs): A(f"v_mov_b32 v{tmp+k}, v{r}")
            if len(regs) < 3: A("s_nop 1" if len(regs) < 2 else "s_nop 0")
            for k, r in enumerate(regs): A(f"{sw} v{r}, v{tmp+k}")
            for k, r in enumerate(regs): A(f"{op} v{r}, v{r}, v{tmp+k}")
    def sexpr(dst, terms, const=0, tmp="s4"):
        first = True
        for (src, sh, wd, shl) in terms:
            t = dst if first else tmp
            if wd is not None:
                if sh == 0: A(f"s_and_b32 {t}, {src}, {(1<<wd)-1}")
                else: A(f"s_bfe_u32 {t}, {src}, {(wd<<16)|sh:#x}")
                cur = t
            elif sh: A(f"s_lshr_b32 {t}, {src}, {sh}"); cur = t
            else: cur = src
            if shl: A(f"s_lshl_b32 {t}, {cur}, {shl}"); cur = t
            if first:
                if cur != dst: A(f"s_mov_b32 {dst}, {cur}")
            else: A(f"s_add_u32 {dst}, {dst}, {cur}")
            first = False
        if const: A(f"s_add_u32 {dst}, {dst}, {const:#x}")
    def vexpr(dst, terms, sadd=None, tmp="v5"):
        first = True
        for (sh, wd, shl) in terms:
            if first:
                A(f"v_bfe_u32 {dst}, v1, {sh}, {wd}")
                if shl: A(f"v_lshlrev_b32 {dst}, {shl}, {dst}")
            else:
                A(f"v_bfe_u32 {tmp}, v1, {sh}, {wd}", f"v_lshl_add_u32 {dst}, {tmp}, {shl}, {dst}")
            first = False
        if sadd: A(f"v_add_u32 {dst}, {sadd}, {dst}")
    X, IDX, WV = "s38", "s39", "s37"
    MF = "v_mfma_f32_16x16x32_bf16"
    def vr(a, n=4): return f"v[{a}:{a+n-1}]"

    A.L.append(HEADER.rstrip())
    A.L.append(f"; @launch grid=(256,1,1) block=(640,1,1) lds={LDS_BYTES}")
    A.L.append(DOC)
    A.L += ['.amdgcn_target "amdgcn-amd-amdhsa--gfx950"', ".text", f".globl {NAME}_kernel", ".p2align 8", f".type {NAME}_kernel,@function"]
    A.label(f"{NAME}_kernel")
    if stamps:
        A("s_memrealtime s[64:65]"); st_idx[0] = 1
    if PROBE: A("s_memrealtime s[64:65]")
    def probe(name):
        if PROBE == name:
            A("s_memrealtime s[66:67]", "s_waitcnt lgkmcnt(0)", "s_sub_u32 s66, s66, s64", "v_mov_b32 v5, s66",
              "s_mov_b64 exec, 1", "ds_max_u32 v2, v5 offset:60", "s_mov_b64 exec, -1")
    assert ORDER.split()[0] == "w1" and KPRE == 8
    A("s_cmp_ge_u32 s2, 256", "s_cbranch_scc1 L_end",
      "s_load_dwordx16 s[8:23], s[0:1], 0", "s_load_dwordx8 s[24:31], s[0:1], 64", "s_load_dwordx2 s[34:35], s[0:1], 104",
      "v_readfirstlane_b32 s37, v0", "v_and_b32 v1, 63, v0", "s_and_b32 s38, s2, 7", "s_lshr_b32 s39, s2, 3", "s_lshr_b32 s37, s37, 6")
    if IXOR: A(f"s_xor_b32 s39, s39, {IXOR}")
    A("s_cmp_lg_u32 s37, 0", "s_cbranch_scc1 L_others")
    A("s_lshl_b32 s3, s38, 3", "s_and_b32 s6, s39, 7", "s_add_u32 s3, s3, s6", "s_lshl_b32 s3, s3, 7",
      "s_lshr_b32 s7, s39, 3", f"s_lshl_b32 s4, s7, {[20, 16, 13][QMAP]}", "s_add_u32 s4, s4, s3",
      "v_lshrrev_b32 v15, 3, v1", "v_and_b32 v16, 7, v1", *(["v_and_b32 v17, 2, v15", "v_xor_b32 v16, v16, v17"] if SWZ else []),
      f"v_lshlrev_b32 v8, {[13, 13, 15][QMAP]}, v15", "v_lshl_add_u32 v8, v16, 4, v8",
      "v_lshlrev_b32 v9, 4, v1", f"s_movk_i32 m0, {L_X:#x}", "s_movk_i32 s46, 2048", "s_mov_b32 s47, 0x20000",
      "s_mov_b32 s42, 0x400000", "s_mov_b32 s43, s47", "s_mov_b32 s51, s47", "s_mov_b32 s50, 1835008",
      "s_mul_i32 s5, s38, 7", "s_lshr_b32 s5, s5, 1", "s_add_u32 s5, s5, s7", "s_lshl_b32 s5, s5, 7",
      f"s_mul_i32 s6, s6, {64*3584}", "s_add_u32 s5, s5, s6",
      "s_movk_i32 s7, 3584", "v_mul_u32_u24 v22, s7, v15", "v_lshl_add_u32 v22, v16, 4, v22", "s_movk_i32 s6, 16",
      "s_waitcnt lgkmcnt(0)")
    if TLB2: A("s_load_dword s96, s[14:15], s4", "s_load_dword s97, s[20:21], s5")
    A("s_mov_b64 s[44:45], s[8:9]", "s_mov_b64 s[40:41], s[14:15]")
    if stamps is True: A("s_memrealtime s[80:81]")
    A("buffer_load_dwordx4 v9, s[44:47], 0 offen lds", "buffer_load_dwordx4 v9, s[44:47], 0 offen offset:1024 lds",
      f"s_movk_i32 m0, {L_WQ:#x}", "s_mov_b64 s[48:49], s[20:21]")
    if stamps is True: A("s_memrealtime s[82:83]")
    A.label("L_lq")
    A(f"buffer_load_dwordx4 v8, s[40:43], s4 offen {nt} lds", *(["v_xor_b32 v8, 64, v8"] if SWZ else []), "s_addk_i32 m0, 0x400", f"s_add_u32 s4, s4, {[0x10000, 0x40000, 0x40000][QMAP]:#x}",
      "s_sub_u32 s6, s6, 1", "s_cmp_lg_u32 s6, 0", "s_cbranch_scc1 L_lq")
    if stamps is True: A("s_memrealtime s[84:85]")
    A(f"s_mov_b32 m0, {L_W1:#x}", "s_movk_i32 s6, 8")
    A.label("L_l1")
    A(f"buffer_load_dwordx4 v22, s[48:51], s5 offen {nt} lds", *(["v_xor_b32 v22, 64, v22"] if SWZ else []), "s_addk_i32 m0, 0x400", f"s_addk_i32 s5, {8*3584}",
      "s_sub_u32 s6, s6, 1", "s_cmp_lg_u32 s6, 0", "s_cbranch_scc1 L_l1")
    if stamps is True: A("s_memrealtime s[86:87]")
    A("s_branch L_loader")
    A.label("L_others")
    A("s_cmp_eq_u32 s37, 9", "s_cbranch_scc0 L_notr0")
    A("s_getpc_b64 s[48:49]")
    A.label("L_pc")
    A(f"s_sub_u32 s48, s48, L_pc-{NAME}_kernel", "s_subb_u32 s49, s49, 0",
      "v_lshlrev_b32 v15, 7, v1", f"v_min_u32 v16, L_end-{NAME}_kernel, v15", "global_load_dword v60, v16, s[48:49]",
      "v_add_u32 v15, 0x2000, v15", f"v_min_u32 v16, L_end-{NAME}_kernel, v15", "global_load_dword v61, v16, s[48:49]",
      "v_mov_b32 v2, 0", "v_lshlrev_b32 v8, 2, v1", f"v_add_u32 v9, {L_Z:#x}, v8", "ds_write_b32 v9, v2", "s_mov_b64 exec, 0xffff", "ds_write_b32 v8, v2", "s_mov_b64 exec, -1")
    A.label("L_notr0")
    def common_regs():
        A("v_mov_b32 v2, 0", "v_mov_b32 v3, 1", "v_lshrrev_b32 v6, 4, v1", "v_and_b32 v7, 15, v1")
        if stamps:
            A("s_mov_b32 s93, s37")
            for i in range(1, 14):
                if not (stamps is True and i in (8, 10, 11) and False): pass
    if TLB:
        sexpr("s3", [(IDX, 4, None, 24), (X, 0, None, 21)], 0x180000)
        A("s_lshl_b32 s5, s38, 19")
    A("s_waitcnt lgkmcnt(0)", "s_load_dword s36, s[34:35], 0")
    if TLB:
        A("s_cmp_eq_u32 s37, 8", "s_cbranch_scc0 L_notlb",
          "s_load_dword s97, s[10:11], s3", "s_load_dword s98, s[24:25], 0",
          "s_load_dword s99, s[12:13], s3", "s_load_dword s100, s[16:17], s5")
        A.label("L_notlb")
    common_regs()
    if stamps:
        for i in range(1, 14): A(f"s_mov_b32 s{64+2*i}, 0")
    A("s_cmp_eq_u32 s37, 9", "s_cbranch_scc1 L_rrole", "s_branch L_notl")
    A.label("L_loader")
    common_regs()
    if stamps:
        for i in range(1, 14):
            if not (stamps is True and i in (8, 9, 10, 11)): A(f"s_mov_b32 s{64+2*i}, 0")
    loads = [([], None)] * 18
    NQ = len(loads)
    common = ["v_lshlrev_b32 v14, 10, v6", "v_lshl_add_u32 v14, v7, 4, v14"]
    if SWZ: common = ["v_lshlrev_b32 v14, 1, v6", "v_xor_b32 v14, v14, v7", "v_lshlrev_b32 v14, 4, v14", "v_lshl_add_u32 v14, v6, 10, v14", "v_xor_b32 v23, 128, v14"]
    if RPP is None: RPP = {0: 128, 1: 4, 2: 16}[ILV]
    lg2 = RPP.bit_length() - 1
    kvset = ["s_lshr_b32 s3, s39, 4", "s_lshl_b32 s3, s3, 24", "s_lshl_b32 s4, s38, 21", "s_add_u32 s3, s3, s4",
             "s_and_b32 s5, s39, 15", f"s_lshl_b32 s5, s5, {8+lg2}"] + ([] if SX else ["s_add_u32 s3, s3, s5"]) + ["s_add_u32 s3, s3, 0x180000"]
    def rowoff(r): return ((r >> lg2) * 16 * RPP + (r & (RPP - 1))) * 256
    KVN = rowoff(127) + 256 if not SX else 0x80000
    kvset += srd_off_l(40, 10, "s3", KVN) + srd_off_l(44, 12, "s3", KVN)
    if RPP >= 4: gro = ["v_lshlrev_b32 v20, 8, v6"]
    elif RPP == 2: gro = ["v_and_b32 v20, 1, v6", "v_lshlrev_b32 v20, 8, v20", "v_lshrrev_b32 v21, 1, v6", "v_lshl_add_u32 v20, v21, 13, v20"]
    else: gro = ["v_lshlrev_b32 v20, 12, v6"]
    kvset += gro + ["v_xor_b32 v18, v7, v6", "v_lshl_add_u32 v10, v18, 4, v20",
              "v_xor_b32 v11, 64, v10", "v_xor_b32 v12, 128, v10", "v_xor_b32 v13, 192, v10",
              "v_lshlrev_b32 v18, 1, v6", "v_xor_b32 v18, v18, v7", "v_lshl_add_u32 v18, v18, 4, v20",
              "v_xor_b32 v19, 128, v18"]
    grp = {}
    if ROT is not None:
        assert RPP <= 4
        kvset += ["s_lshl_b32 s33, s38, 1", "s_lshr_b32 s4, s39, 4", "s_add_u32 s33, s33, s4", f"s_mul_i32 s33, s33, {ROT}", "s_and_b32 s33, s33, 31", "s_lshl_b32 s33, s33, 14"]
        if SX: kvset += ["s_add_u32 s33, s33, s5"]
    def kvgroup(lbase, srd_, vsel, first):
        g = []; cur = None
        if ROT is not None:
            for j in range(32):
                pre = (list(first) + ["s_mov_b32 s32, s33"]) if j == 0 else ["s_add_u32 s32, s32, 0x4000", "s_and_b32 s32, s32, 0x7ffff"]
                pre = [f"s_mov_b32 m0, {lbase + j*1024:#x}"] + pre
                if SX:
                    assert RPP == 4
                    pre = pre + [f"s_xor_b32 s4, s32, {((j * SX) & 15) << 10:#x}"]
                g.append((pre, f"buffer_load_dwordx4 v{vsel(j)}, {srd_}, {'s4' if SX else 's32'} offen {nt} lds"))
            return g
        for j in range(32):
            pre = list(first) if j == 0 else []
            lo, so = lbase + j*1024, rowoff(4*j)
            if cur is not None and 0 <= lo - cur[0] <= 3072 and lo - cur[0] == so - cur[1]:
                imm = lo - cur[0]
            else:
                cur = (lo, so); imm = 0
                pre += [f"s_mov_b32 m0, {lo:#x}", f"s_mov_b32 s4, {so}"]
            g.append((pre, f"buffer_load_dwordx4 v{vsel(j)}, {srd_}, s4 offen offset:{imm} {nt} lds"))
        return g
    grp["K"] = kvgroup(L_K, "s[40:43]", lambda j: 10 + (j & 3), kvset)
    grp["V"] = kvgroup(L_V, "s[44:47]", lambda j: 18 + ((j >> 1) & 1), [])
    g = []
    grp["w1"] = [([], None)] * 8; g = []
    woset = ["s_lshl_b32 s3, s38, 19", "s_lshr_b32 s4, s39, 2", "s_lshl_b32 s4, s4, 16", "s_add_u32 s3, s3, s4",
             "s_and_b32 s4, s39, 3", "s_lshl_b32 s4, s4, 8", "s_add_u32 s3, s3, s4"] + srd_off_l(56, 16, "s3", 63*1024 + 256)
    for j in range(16):
        pre = (woset if j == 0 else []) + [f"s_mov_b32 m0, {L_WO + j*1024:#x}", f"s_mov_b32 s4, {j*4096}"]
        g.append((pre, f"buffer_load_dwordx4 v{23 if SWZ and (j >> 1) & 1 else 14}, s[56:59], s4 offen {nt} lds"))
    grp["wo"] = g; g = []
    w2set = ["s_mul_i32 s3, s38, 224", "s_lshr_b32 s4, s39, 2", "s_mul_i32 s4, s4, 28", "s_add_u32 s3, s3, s4", "s_lshl_b32 s3, s3, 10",
             "s_and_b32 s4, s39, 3", "s_lshl_b32 s4, s4, 8", "s_add_u32 s3, s3, s4"] + srd_off_l(60, 24, "s3", 27*1024 + 256)
    for j in (7, 0, 1, 2, 3, 4, 5, 6):
        pre = (w2set if j == 7 else []) + [f"s_mov_b32 m0, {L_W2 + j*1024:#x}", f"s_mov_b32 s4, {j*4096}"]
        g.append((pre, f"buffer_load_dwordx4 v{23 if SWZ and (j >> 1) & 1 else 14}, s[60:63], s4 offen {nt} lds"))
    grp["w2"] = g
    endpos = {}
    names = ORDER.split()
    assert names.index("K") < names.index("V")
    for gi, name in enumerate(names):
        g = list(grp[name])
        if gi == 0: g[0] = (common + g[0][0], g[0][1])
        loads += g
        endpos[name] = len(loads)
    NALL = len(loads); assert NALL == 114
    NK = endpos["K"]; NV = endpos["V"]; NV1 = NV - 8; NW1 = endpos["w1"]; NWO = endpos["wo"]; NW2 = endpos["w2"]
    NPQ = NQ + PQ; NPH = min(NALL, NW1 + PH); NPM = NV - PM; NPO = max(NV, NALL - PO)
    thresholds = sorted(set([NK, NV1, NV, NW1, NWO, NW2, NPH, NPO, NALL] + [NQ + q for q in (PQS or [])] + ([NV - CPR] if CPR is not None else [])))
    if PQS: QN = len(PQS)
    stamped = set(); landed = 0; ti = [0]
    def prog(l):
        hit = None
        while ti[0] < len(thresholds) and thresholds[ti[0]] <= l:
            hit = thresholds[ti[0]]; ti[0] += 1
        if hit is not None:
            A(f"v_mov_b32 v17, {hit}", "s_mov_b64 exec, 1", f"ds_write_b32 v2, v17 offset:{F_PR}", "s_mov_b64 exec, -1")
            for q, slot in [(NK, 3), (NV1, 4), (NV, 5), (NW1, 6), (NALL, 7)]:
                if q <= hit and slot not in stamped:
                    stamped.add(slot); stamp_reset(slot); stamp(); probe({3: "K", 4: "V1", 5: "V", 6: "w1", 7: "all"}[slot])
    bar = [False]
    for i, (pre, ld) in enumerate(loads):
        A(*pre)
        w = WIN
        for (pos, ww) in (WSCHED or []):
            if i >= pos: w = ww
        if SLIDE:
            if not bar[0]: w = SLIDE
            if i >= NQ + KPRE and i - landed >= w:
                A(f"s_waitcnt vmcnt({w-1})"); landed = i - w + 1
                if landed >= NQ and not bar[0]:
                    bar[0] = True; stamp_reset(2); stamp(); A("s_barrier"); probe("wq")
                if bar[0]: prog(landed)
        else:
            if i == NQ + KPRE:
                stamp(); A(f"s_waitcnt vmcnt({KPRE})"); stamp(); A("s_barrier"); landed = NQ; probe("wq")
            if i > NQ + KPRE and i - landed >= w:
                A(f"s_waitcnt vmcnt({w-1})"); landed = i - w + 1; prog(landed)
        if ld: A(ld)
    for t in thresholds:
        if t > landed:
            A(f"s_waitcnt vmcnt({NALL - t})"); landed = t; prog(landed)
    write_stamps()
    A("s_endpgm")

    A.label("L_notl")
    A("s_getreg_b32 s49, hwreg(HW_REG_XCC_ID, 0, 4)")
    srd(52, "s34", "s35", WS_SIZE)
    selregs()
    A("s_cmp_ge_u32 s37, 5", "s_cbranch_scc1 L_kv")

    stamp_reset(1)
    A("s_sub_u32 s37, s37, 1")
    sexpr("s3", [(X, 0, None, 14), (IDX, 1, 2, 11), (IDX, 3, None, 9), (IDX, 0, 1, 8), (WV, 0, None, 6)], WS_QP)
    A(f"s_xor_b32 s5, s3, {DB:#x}")
    vexpr("v60", [(0, 1, 13), (4, 2, 4)])
    vexpr("v10", [(0, 1, 10), (4, 2, 4)])
    assert QMAP in (0, 1)
    sexpr("s4", [(IDX, 3, None, 8 if QMAP == 0 else 4)])
    if QMAP == 0: A("v_add_u32 v11, s4, v10")
    else: vexpr("v11", [(0, 1, 10), (4, 2, 6)], "s4")
    A("s_lshl_b32 s4, s37, 5")
    if SWZ:
        vexpr("v13", [(3, 1, 5), (4, 1, 6)])
        A("v_xor_b32 v13, s4, v13")
        vexpr("v12", [(4, 2, 10), (2, 2, 7), (0, 2, 3)])
        A("v_add_u32 v12, v12, v13")
    else:
        vexpr("v12", [(4, 2, 10), (2, 2, 7), (0, 2, 3)], "s4")
    A("s_mov_b32 s56, 0x00030003", "s_mov_b32 s57, 0x00030003", "s_waitcnt lgkmcnt(0)")
    mktag()
    A("s_xor_b32 s4, s36, s49", "v_mov_b32 v59, s4")
    XA = 16; WB = 36; DQ = 52
    A("s_barrier")
    stamp()
    for i in range(4):
        A(f"ds_read_b128 {vr(XA+4*i)}, v11 offset:{L_X+(64 if QMAP == 0 else 256)*i}",
          f"ds_read_b64_tr_b16 {vr(WB+4*i,2)}, v12 offset:{L_WQ+4096*i}", f"ds_read_b64_tr_b16 {vr(WB+4*i+2,2)}, v12 offset:{L_WQ+4096*i+512}")
    for i in range(4):
        A(lg(9-3*i), f"{MF} {vr(DQ)}, {vr(WB+4*i)}, {vr(XA+4*i)}, {'0' if i == 0 else vr(DQ)}")
    A("s_nop 7")
    round24(DQ)
    pack24(56, DQ)
    A("s_mov_b64 exec, s[56:57]", "buffer_store_dwordx4 v[56:59], v60, s[52:55], s3 offen",
      "buffer_store_dwordx4 v[56:59], v60, s[52:55], s5 offen sc1", "s_mov_b64 exec, -1")
    stamp()
    probe("qpub")
    sexpr("s4", [(IDX, 0, 3, 7)])
    A("v_add_u32 v11, s4, v10", f"s_mov_b32 s4, {L_W1}", "v_add_u32 v13, s4, v12",
      f"ds_read_b128 v[16:19], v11 offset:{L_X}", f"ds_read_b128 v[20:23], v11 offset:{L_X+64}")
    sexpr("s63", [(X, 0, None, 3), (IDX, 0, 3, 0)])
    A(f"s_mul_i32 s63, s63, {HPS}")
    sexpr("s62", [("s63", 0, None, 0), (IDX, 3, None, 8), (WV, 0, None, 6)], WS_HP)
    A("v_mov_b32 v79, s36")
    lds_wait(F_PR, NW1, sleep=SLEEP)
    for i in range(2):
        A(f"ds_read_b64_tr_b16 {vr(24+4*i,2)}, v13 offset:{4096*i}", f"ds_read_b64_tr_b16 {vr(26+4*i,2)}, v13 offset:{4096*i+512}")
    A("s_waitcnt lgkmcnt(0)", f"{MF} v[52:55], v[24:27], v[16:19], 0", f"{MF} v[52:55], v[28:31], v[20:23], v[52:55]", "s_nop 7")
    round24(52)
    pack24(76, 52)
    A("s_mov_b64 exec, s[56:57]", "buffer_store_dwordx4 v[76:79], v10, s[52:55], s62 offen", "s_mov_b64 exec, -1")
    stamp_reset(4)
    stamp()
    stamp_reset(5)
    vexpr("v64", [(3, 3, 11), (3, 3, 7), (0, 3, 4)])
    sexpr("s63", [(X, 0, None, 5), (WV, 1, None, 4)])
    A(f"s_mul_i32 s63, s63, {OPS}")
    sexpr("s58", [("s63", 0, None, 0), (IDX, 2, None, 8), (WV, 0, 1, 7)], WS_OP)
    A(f"s_add_u32 s59, s58, {8*OPS}")
    vexpr("v65", [(3, 3, 4), (0, 1, 7)])
    sexpr("s60", [(X, 0, None, 11), (WV, 1, None, 10), (IDX, 3, None, 8)], WS_ML)
    A("s_lshl_b32 s4, s37, 6")
    vexpr("v66", [(0, 3, 3), (4, 2, 1)], "s4")
    vexpr("v67", [(0, 1, 7), (4, 2, 4)])
    vexpr("v68", [(0, 1, 6), (4, 2, 4)])
    if SWZ:
        vexpr("v71", [(2, 2, 5), (4, 1, 7)])
        A("s_lshl_b32 s4, s37, 6", "v_xor_b32 v71, s4, v71", f"s_mov_b32 s4, {L_WO}")
        vexpr("v69", [(4, 2, 11), (2, 2, 8), (0, 2, 3)], "s4")
        A("v_add_u32 v69, v69, v71", "v_xor_b32 v71, 32, v69")
    else:
        A("s_lshl_b32 s4, s37, 6", f"s_add_u32 s4, s4, {L_WO}")
        vexpr("v69", [(4, 2, 11), (2, 2, 8), (0, 2, 3)], "s4")
        A("v_add_u32 v71, 32, v69")
    sexpr("s61", [(X, 0, None, 15), (IDX, 0, None, 10), (WV, 0, None, 8), (X, 0, None, 10), (IDX, 2, None, 7)], WS_CP)
    vexpr("v70", [(4, 2, 6), (0, 2, 4)])
    vexpr("v73", [(0, 1, 2)])
    A("v_bfe_u32 v5, v1, 1, 1", "v_cmp_eq_u32 s[42:43], 1, v5", "v_mov_b32 v123, s36",
      "s_mov_b32 s40, 0x000f000f", "s_mov_b32 s41, 0x000f000f", "s_mov_b32 s50, 0x00ff00ff", "s_mov_b32 s51, 0x00ff00ff")
    if CPRE:
        A("s_not_b32 s4, s36", "v_mov_b32 v127, s4", "v_mov_b32 v124, 0", "v_mov_b32 v125, 0", "v_mov_b32 v126, 0",
          "s_mov_b64 exec, s[40:41]", "buffer_store_dwordx4 v[124:127], v70, s[52:55], s61 offen sc1", "s_mov_b64 exec, -1")
    lds_wait(F_Q, 4, [f"ds_read_b32 v5, v2 offset:{F_NL}"], sleep=SLEEP)
    A("v_readfirstlane_b32 s4, v5", "s_cmp_eq_u32 s4, 0", "s_cbranch_scc1 L_w_loc", f"s_xor_b32 s62, s62, {DB:#x}",
      "s_mov_b64 exec, s[56:57]", "buffer_store_dwordx4 v[76:79], v10, s[52:55], s62 offen sc1", "s_mov_b64 exec, -1")
    A.label("L_w_loc")
    BO = 32
    rd2 = []
    for n in range(2):
        r = BO + 16 + 4*n
        rd2 += [f"ds_read_b64_tr_b16 {vr(r,2)}, v{69+2*n} offset:{L_W2-L_WO}", f"ds_read_b64_tr_b16 {vr(r+2,2)}, v{69+2*n} offset:{L_W2-L_WO + 1024}"]
    rd = []
    for i in range(2):
        for n in range(2):
            r = BO + 8*i + 4*n
            rd += [f"ds_read_b64_tr_b16 {vr(r,2)}, v{69+2*n} offset:{8192*i}", f"ds_read_b64_tr_b16 {vr(r+2,2)}, v{69+2*n} offset:{8192*i + 1024}"]
    if LATEB:
        early_wo = False
        rd = rd + rd2
        NWO = max(NWO, NW2)
    else:
        lds_wait(F_PR, NW2, sleep=SLEEP)
        A(*rd2)
        early_wo = NWO <= NV
        if early_wo:
            lds_wait(F_PR, NWO, sleep=SLEEP); A(*rd)
        lds_wait(F_H, 1, [f"ds_read_b128 v[92:95], v68 offset:{L_HB}", f"ds_read_b32 v80, v73 offset:{L_G}", f"ds_read_b32 v81, v73 offset:{L_G+8}"], sleep=SLEEP)
        A(f"{MF} v[104:107], {vr(BO+16)}, v[92:95], 0", f"{MF} v[108:111], {vr(BO+20)}, v[92:95], 0", "s_nop 7")
        for i in range(4): A(f"v_cndmask_b32 v{104+i}, v{104+i}, v{108+i}, s[42:43]")
        for i in range(4): A(f"v_mul_f32 v{104+i}, v{104+i}, v81")
    if TIGHT: lds_wait(F_PR, NV1, sleep=SLEEP)
    if WOP: lds_wait(F_OP, 4, sleep=0 if TIGHT else SLEEP)
    stamp()
    if NPO > NV or not WOP: lds_wait(F_PR, NPO, sleep=0 if WOP else SLEEP)
    def frags():
        if not early_wo and not FLATE:
            lds_wait(F_PR, NWO); A(*rd)
    opl = [("buffer_load_dwordx4 v[112:115], v65, s[52:55], s60 offen sc1", 115),
           ("buffer_load_dwordx4 v[96:99], v64, s[52:55], s58 offen sc1", 99),
           ("buffer_load_dwordx4 v[100:103], v64, s[52:55], s59 offen sc1", 103)]
    if ON > 1:
        op2 = ["buffer_load_dwordx4 v[128:131], v65, s[52:55], s60 offen sc1", "buffer_load_dwordx4 v[132:135], v64, s[52:55], s58 offen sc1",
               "buffer_load_dwordx4 v[136:139], v64, s[52:55], s59 offen sc1"]
        for l, _ in opl: A(l)
        frags()
        A("s_mov_b32 s7, 24")
        A.label("L_opl")
        A(*op2)
        A("s_waitcnt vmcnt(3)")
        tagcheck([115, 99, 103])
        A("s_cbranch_scc1 L_opok")
        A("s_waitcnt vmcnt(0)") if False else None
        A("buffer_load_dwordx4 v[140:143], v65, s[52:55], s60 offen sc1", "buffer_load_dwordx4 v[144:147], v64, s[52:55], s58 offen sc1",
          "buffer_load_dwordx4 v[148:151], v64, s[52:55], s59 offen sc1")
        A.label("L_opl2")
        A("s_waitcnt vmcnt(3)")
        tagcheck([131, 135, 139])
        A("s_cbranch_scc1 L_opc1")
        A(*op2)
        A("s_waitcnt vmcnt(3)")
        tagcheck([143, 147, 151])
        A("s_cbranch_scc1 L_opc2")
        A("buffer_load_dwordx4 v[140:143], v65, s[52:55], s60 offen sc1", "buffer_load_dwordx4 v[144:147], v64, s[52:55], s58 offen sc1",
          "buffer_load_dwordx4 v[148:151], v64, s[52:55], s59 offen sc1")
        A("s_sub_u32 s7, s7, 1", "s_cmp_lg_u32 s7, 0", "s_cbranch_scc1 L_opl2")
        mpoll(opl, soffs=["s60", "s58", "s59"])
        A("s_branch L_opok")
        A.label("L_opc1")
        A("v_mov_b32 v112, v128", "v_mov_b32 v113, v129")
        for i in range(3): A(f"v_mov_b32 v{96+i}, v{132+i}", f"v_mov_b32 v{100+i}, v{136+i}")
        A("s_branch L_opok")
        A.label("L_opc2")
        A("v_mov_b32 v112, v140", "v_mov_b32 v113, v141")
        for i in range(3): A(f"v_mov_b32 v{96+i}, v{144+i}", f"v_mov_b32 v{100+i}, v{148+i}")
        A.label("L_opok")
    else:
        mpoll(opl, soffs=["s60", "s58", "s59"], between=frags)
    stamp()
    probe("ops")
    if stamps is True: A("s_mov_b32 s88, s7")
    A(f"v_max_f32_dpp v116, v112, v112 {ROW[0]} {DPPM}",
      "v_lshlrev_b32 v24, 8, v96", "v_perm_b32 v25, v97, v96, s47",
      f"v_max_f32_dpp v116, v116, v116 row_ror:8 {DPPM}",
      "v_perm_b32 v26, v98, v97, s48", "v_mov_b32 v117, v116",
      "v_and_b32 v27, 0xffffff00, v98", "v_lshlrev_b32 v28, 8, v100",
      "v_permlane16_swap_b32 v116, v117", "v_max_f32 v116, v116, v117", "v_mov_b32 v117, v116",
      "v_perm_b32 v29, v101, v100, s47", "v_perm_b32 v30, v102, v101, s48",
      "v_permlane32_swap_b32 v116, v117", "v_max_f32 v116, v116, v117",
      "v_sub_f32 v116, v112, v116", "v_exp_f32 v116, v116", "v_and_b32 v31, 0xffffff00, v102",
      "v_mul_f32 v118, v116, v113")
    for i in range(4): A(f"v_mul_f32_dpp v{24+i}, v116, v{24+i} quad_perm:[0,0,2,2] {DPPM}")
    A(f"v_add_f32_dpp v118, v118, v118 {ROW[0]} {DPPM}")
    for i in range(4): A(f"v_fmac_f32_dpp v{24+i}, v116, v{28+i} quad_perm:[1,1,3,3] {DPPM}")
    A(f"v_add_f32_dpp v118, v118, v118 row_ror:8 {DPPM}",
      "v_permlane32_swap_b32 v24, v26", "v_permlane32_swap_b32 v25, v27", "v_mov_b32 v119, v118",
      "v_add_f32 v24, v24, v26", "v_add_f32 v25, v25, v27",
      "v_permlane16_swap_b32 v118, v119", "v_add_f32 v118, v118, v119",
      "v_permlane16_swap_b32 v24, v25", "v_mov_b32 v119, v118", "v_add_f32 v24, v24, v25", "s_nop 0",
      "v_permlane32_swap_b32 v118, v119", f"v_add_f32_dpp v24, v24, v24 row_ror:8 {DPPM}", "v_add_f32 v118, v118, v119",
      "v_rcp_f32 v118, v118", "s_mov_b64 exec, s[50:51]", "v_mul_f32 v24, v24, v118", "v_cvt_pk_bf16_f32 v24, v24, v24",
      f"ds_write_b16 v66, v24 offset:{L_OB}")
    flag_add(F_A)
    if LATEB:
        lds_wait(F_A, 5, [f"ds_read_b128 v[84:87], v67 offset:{L_OB}", f"ds_read_b128 v[88:91], v67 offset:{L_OB+64}", f"ds_read_b128 v[92:95], v68 offset:{L_HB}",
                          f"ds_read_b32 v80, v73 offset:{L_G}", f"ds_read_b32 v81, v73 offset:{L_G+8}"])
        stamp()
        A(f"{MF} v[104:107], {vr(BO+16)}, v[92:95], 0", f"{MF} v[108:111], {vr(BO+20)}, v[92:95], 0",
          f"{MF} v[96:99], {vr(BO)}, v[84:87], 0", f"{MF} v[100:103], {vr(BO+4)}, v[84:87], 0",
          f"{MF} v[96:99], {vr(BO+8)}, v[88:91], v[96:99]", f"{MF} v[100:103], {vr(BO+12)}, v[88:91], v[100:103]", "s_nop 3")
        for i in range(4): A(f"v_cndmask_b32 v{104+i}, v{104+i}, v{108+i}, s[42:43]")
        for i in range(4): A(f"v_mul_f32 v{104+i}, v{104+i}, v81")
    else:
        ofr = [f"ds_read_b128 v[84:87], v67 offset:{L_OB}", f"ds_read_b128 v[88:91], v67 offset:{L_OB+64}"]
        if FLATE and not early_wo:
            A(f"ds_read_b32 v5, v2 offset:{F_PR}", *rd)
            lds_wait(F_A, 4, ofr)
            A("v_readfirstlane_b32 s4, v5", f"s_cmp_ge_u32 s4, {NWO}", "s_cbranch_scc1 L_frok")
            lds_wait(F_PR, NWO, rd)
            A.label("L_frok")
        else:
            lds_wait(F_A, 4, ofr)
        stamp()
        A(f"{MF} v[96:99], {vr(BO)}, v[84:87], 0", f"{MF} v[100:103], {vr(BO+4)}, v[84:87], 0",
          f"{MF} v[96:99], {vr(BO+8)}, v[88:91], v[96:99]", f"{MF} v[100:103], {vr(BO+12)}, v[88:91], v[100:103]", "s_nop 7")
    for i in range(4): A(f"v_cndmask_b32 v{96+i}, v{96+i}, v{100+i}, s[42:43]")
    for i in range(4): A(f"v_fmac_f32 v{104+i}, v{96+i}, v80")
    pack24(120, 104)
    A("s_mov_b64 exec, s[40:41]", "buffer_store_dwordx4 v[120:123], v70, s[52:55], s61 offen sc1")
    probe("cpp")
    stamp()
    if CACK: A("s_waitcnt vmcnt(0)")
    flag_add(F_CP)
    write_stamps()
    A("s_endpgm")

    A.label("L_kv")
    stamp_reset(1)
    A("s_sub_u32 s37, s37, 5")
    A("v_and_b32 v14, 3, v1", "v_mul_u32_u24 v14, 272, v14", "v_lshl_add_u32 v14, v6, 4, v14")
    A("v_xor_b32 v12, v7, v6", "v_lshlrev_b32 v12, 4, v12", "v_lshl_add_u32 v120, v7, 8, v12",
      "s_lshl_b32 s4, s37, 13", f"s_add_u32 s5, s4, {L_K}", "v_add_u32 v120, s5, v120",
      "v_xor_b32 v121, 64, v120", "v_xor_b32 v122, 128, v120", "v_xor_b32 v123, 192, v120")
    vexpr("v13", [(2, 2, 1), (4, 1, 3)])
    A("s_lshl_b32 s4, s37, 2", "v_bfe_u32 v5, v1, 1, 1", "v_add_u32 v5, s4, v5", "v_xor_b32 v13, v13, v5", "v_lshlrev_b32 v13, 4, v13")
    A(f"s_mov_b32 s4, {L_V}")
    vexpr("v12", [(4, 2, 11), (2, 2, 8), (0, 1, 3)], "s4")
    A("v_add_u32 v12, v12, v13", "v_xor_b32 v13, 32, v12")
    A("s_lshl_b32 s4, s37, 5")
    vexpr("v8", [(0, 2, 3)], "s4")
    vexpr("v9", [(0, 2, 3)])
    A("s_lshl_b32 s4, s37, 6")
    vexpr("v10", [(3, 1, 5), (4, 2, 3), (2, 1, 2)], "s4")
    A("v_and_b32 v5, 3, v1", "v_mul_u32_u24 v5, 272, v5", "v_add_u32 v10, v10, v5")
    sexpr("s3", [(X, 0, None, 16), (IDX, 0, None, 11), (WV, 0, None, 7), (X, 0, None, 12), (IDX, 0, None, 7)], WS_OP)
    vexpr("v11", [(0, 2, 9), (2, 1, 6), (4, 2, 4)])
    sexpr("s5", [(X, 0, None, 11), (IDX, 4, None, 10), (IDX, 0, 4, 4)], WS_ML)
    vexpr("v124", [(0, 2, 8)])
    A("v_bfe_u32 v5, v1, 2, 1", "v_cmp_eq_u32 s[42:43], 1, v5", "v_bfe_u32 v5, v1, 3, 1", "v_cmp_eq_u32 s[58:59], 1, v5",
      f"v_add_u32 v125, {L_P:#x}, v14", f"v_mov_b32 v5, {L_Z:#x}",
      "v_cndmask_b32 v126, v5, v125, s[42:43]", "v_cndmask_b32 v125, v125, v5, s[42:43]",
      "s_mov_b32 s50, 0x00ff00ff", "s_mov_b32 s51, 0x00ff00ff", "s_waitcnt lgkmcnt(0)")
    mktag()
    A("v_mov_b32 v119, s36", "v_mov_b32 v115, s36")
    sexpr("s40", [(X, 0, None, 14), (IDX, 4, None, 13), (WV, 0, None, 11)], WS_QP)
    A("s_mul_i32 s4, s37, 272", "v_lshlrev_b32 v62, 3, v1", "v_add_u32 v62, s4, v62", "v_lshlrev_b32 v15, 4, v1", "s_xor_b32 s41, s36, s49")
    A("s_barrier")
    if QD and not PQS: A(f"s_sleep {QD}")
    QB = 128
    def qld(k): A(f"buffer_load_dwordx4 {vr(QB+8*k)}, v15, s[52:55], s40 offen sc1", f"buffer_load_dwordx4 {vr(QB+8*k+4)}, v15, s[52:55], s40 offen offset:1024 sc1")
    def qchk(k, cnt):
        nx = A.uniq("qn")
        A(f"s_waitcnt vmcnt({cnt})")
        tagcheck([QB+8*k+3, QB+8*k+7], "s41")
        A(f"s_cbranch_scc0 {nx}")
        unpack24(36, QB+8*k); unpack24(40, QB+8*k+4)
        if stamps: A(f"s_mov_b32 s90, {100+k}")
        A("s_branch L_qok")
        A.label(nx)
    checked = 0
    for k in range(QN):
        if PQS:
            while checked < k and PQS[checked] + WIN - 2 <= PQS[k]:
                qchk(checked, 2*(k-1-checked)); checked += 1
            lds_wait(F_PR, NQ + PQS[k], sleep=SLEEP)
        qld(k)
        if k < QN - 1 and not PQS: A(f"s_sleep {QSL}")
    for k in range(checked, QN - 1): qchk(k, 2*(QN-1-k))
    r = QB + 8*(QN-1)
    mpoll([(f"buffer_load_dwordx4 {vr(r)}, v15, s[52:55], s40 offen sc1", r+3),
           (f"buffer_load_dwordx4 {vr(r+4)}, v15, s[52:55], s40 offen offset:1024 sc1", r+7)], soffs=["s40"], loose=True, tag="s41", issued=True)
    if stamps: A("s_mov_b32 s90, s7")
    tagcheck([r+3, r+7], "s41")
    A("s_cbranch_scc1 L_qloc")
    flag_add(F_NL)
    A.label("L_qloc")
    unpack24(36, r); unpack24(40, r+4)
    A.label("L_qok")
    for i in range(4): A(f"v_add_f32 v{36+i}, v{36+i}, v{40+i}")
    swap_red("v_add_f32", [36, 37, 38, 39], 40, which=("v_permlane32_swap_b32",))
    A("v_cvt_pk_bf16_f32 v36, v36, v37", "v_cvt_pk_bf16_f32 v37, v38, v39", "s_mov_b64 exec, 0xffffffff", f"ds_write_b64 v62, v[36:37] offset:{L_Q}")
    flag_add(F_Q)
    stamp()
    probe("qlds")
    KR, QR, SR = 16, 80, 96
    kfr = [f"ds_read_b128 {vr(KR+16*t+4*d)}, v{120+d} offset:{4096*t}" for t in range(2) for d in range(4)]
    lds_wait(F_PR, NK, sleep=SLEEP)
    stamp()
    A(*kfr)
    lds_wait(F_Q, 4, [f"ds_read_b128 {vr(QR+4*d)}, v14 offset:{L_Q+64*d}" for d in range(4)] + [f"ds_read_b32 v5, v2 offset:{F_NL}", f"ds_read_b32 v127, v2 offset:{F_PR}"], sleep=SLEEP)
    stamp()
    A("v_readfirstlane_b32 s62, v127")
    for d in range(4):
        for t in range(2):
            A(f"{MF} {vr(SR+4*t)}, {vr(KR+16*t+4*d)}, {vr(QR+4*d)}, {'0' if d == 0 else vr(SR+4*t)}")
    VR = 16; PA = 48; PB = 64; OA = 80; OS = 96
    def vreads(k):
        o = []
        for mt in range(2):
            r = VR + 8*k + 4*mt
            o += [f"ds_read_b64_tr_b16 {vr(r,2)}, v{12+mt} offset:{8192*k}", f"ds_read_b64_tr_b16 {vr(r+2,2)}, v{12+mt} offset:{8192*k+1024}"]
        return o
    A("v_readfirstlane_b32 s63, v5", f"s_cmp_ge_u32 s62, {NV}", "s_cbranch_scc0 L_nospec")
    for k in range(4): A(*vreads(k))
    A.label("L_nospec")
    A("s_nop 4")
    SC = 128 ** -0.5
    if mimic:
        A(f"s_mov_b32 s4, {f2u(SC):#x}")
        for i in range(4): A(f"v_cvt_pk_bf16_f32 v{108+i}, v{SR+2*i}, v{SR+2*i+1}")
        A("v_cndmask_b32 v108, v108, v109, s[42:43]", "v_cndmask_b32 v110, v110, v111, s[42:43]", "v_cndmask_b32 v108, v108, v110, s[58:59]")
        unpack(106, 108)
        A("v_mul_f32 v106, s4, v106", "v_mul_f32 v107, s4, v107", "v_cvt_pk_bf16_f32 v108, v106, v107")
        unpack(106, 108)
        CE = LOG2E
    else:
        A("v_cndmask_b32 v106, v96, v98, s[42:43]", "v_cndmask_b32 v107, v97, v99, s[42:43]", "v_cndmask_b32 v108, v100, v102, s[42:43]",
          "v_cndmask_b32 v109, v101, v103, s[42:43]", "v_cndmask_b32 v106, v106, v108, s[58:59]", "v_cndmask_b32 v107, v107, v109, s[58:59]")
        CE = LOG2E * SC
    A("v_max_f32 v104, v106, v107", f"s_mov_b32 s4, {f2u(CE):#x}", "s_nop 0", f"v_max_f32_dpp v104, v104, v104 row_ror:4 {DPPM}")
    dpp_red("v_max_f32", [104], ["row_ror:8"])
    swap_red("v_max_f32", [104], 105)
    A("v_mul_f32 v104, s4, v104", "v_fma_f32 v106, v106, s4, -v104", "v_fma_f32 v107, v107, s4, -v104",
      "v_exp_f32 v106, v106", "v_exp_f32 v107, v107", "s_nop 0",
      "v_add_f32 v105, v106, v107", "v_cvt_pk_bf16_f32 v108, v106, v107", f"ds_write_b32 v10, v108 offset:{L_P}",
      f"v_add_f32_dpp v105, v105, v105 row_ror:4 {DPPM}")
    dpp_red("v_add_f32", [105], ["row_ror:8"])
    swap_red("v_add_f32", [105], 106)
    A("s_mov_b64 exec, 0xf", f"ds_write_b64 v8, v[104:105] offset:{L_MX}")
    flag_add(F_P)
    prd = [f"ds_read_b64 {vr(96+2*w,2)}, v9 offset:{L_MX+32*w}" for w in range(4)] + \
          [x for k in range(4) for x in (f"ds_read_b128 {vr(PA+4*k)}, v125 offset:{64*k}", f"ds_read_b128 {vr(PB+4*k)}, v126 offset:{64*k}")]
    if PSPEC: lds_wait(F_P, 4, prd)
    else:
        lds_wait(F_P, 4)
        A(*prd)
        A("s_waitcnt lgkmcnt(0)")
    stamp()
    probe("smax")
    def pv(k):
        A(f"{MF} {vr(OA+4*k)}, {vr(VR+8*k)}, {vr(PA+4*k)}, 0", f"{MF} {vr(OA+4*k)}, {vr(VR+8*k+4)}, {vr(PB+4*k)}, {vr(OA+4*k)}")
    def acc(k):
        f = f"v[{104+(k&2)}:{105+(k&2)}]"
        for i in (0, 2):
            if k == 0: A(f"v_pk_mul_f32 {vr(108+i,2)}, {vr(OA+i,2)}, {f} op_sel_hi:[1,0]")
            elif k & 1: A(f"v_pk_fma_f32 {vr(108+i,2)}, {vr(OA+4*k+i,2)}, {f}, {vr(108+i,2)} op_sel:[0,1,0] op_sel_hi:[1,1,1]")
            else: A(f"v_pk_fma_f32 {vr(108+i,2)}, {vr(OA+4*k+i,2)}, {f}, {vr(108+i,2)} op_sel_hi:[1,0,1]")
    def factors(lbl):
        A("v_max3_f32 v112, v96, v98, v100", "v_max_f32 v112, v112, v102")
        for w in range(4): A(f"v_sub_f32 v{104+w}, v{96+2*w}, v112")
        for w in range(4): A(f"v_exp_f32 v{104+w}, v{104+w}")
        A("s_cmp_lg_u32 s37, 0", f"s_cbranch_scc1 {lbl}",
          "v_mul_f32 v113, v104, v97", "v_fmac_f32 v113, v105, v99", "v_fmac_f32 v113, v106, v101", "v_fmac_f32 v113, v107, v103", "s_mov_b64 exec, 0xf",
          "buffer_store_dwordx4 v[112:115], v124, s[52:55], s5 offen",
          "s_cmp_eq_u32 s63, 0", f"s_cbranch_scc1 {lbl}", f"s_xor_b32 s5, s5, {DB:#x}",
          "buffer_store_dwordx4 v[112:115], v124, s[52:55], s5 offen sc1")
        A.label(lbl)
        A("s_mov_b64 exec, -1")
    A(f"s_cmp_ge_u32 s62, {NV}", "s_cbranch_scc0 L_vslow")
    for k in range(4): pv(k)
    factors("L_noml1")
    for k in range(4): acc(k)
    A("s_branch L_vdone")
    A.label("L_vslow")
    factors("L_noml2")
    lds_wait(F_PR, NV1, sleep=SLEEP)
    for k in range(3): A(*vreads(k))
    for k in range(3): A(lg(8-4*k)); pv(k)
    A("s_nop 5")
    for k in range(3): acc(k)
    lds_wait(F_PR, NV, vreads(3))
    stamp()
    pv(3)
    A("s_nop 7")
    acc(3)
    A.label("L_vdone")
    OS = 108
    pack24(116, OS)
    A("s_mov_b64 exec, s[50:51]", "buffer_store_dwordx4 v[116:119], v11, s[52:55], s3 offen",
      "s_cmp_eq_u32 s63, 0", "s_cbranch_scc1 L_oploc", f"s_xor_b32 s3, s3, {DB:#x}",
      "buffer_store_dwordx4 v[116:119], v11, s[52:55], s3 offen sc1")
    A.label("L_oploc")
    flag_add(F_OP)
    stamp()
    probe("pub")
    write_stamps()
    A("s_endpgm")

    A.label("L_rrole")
    stamp_reset(1)
    srd(52, "s34", "s35", WS_SIZE)
    if PROBE in ("xskew", "gskew"):
        A("s_load_dwordx2 s[72:73], s[0:1], 96", "s_waitcnt lgkmcnt(0)", "s_mov_b32 s74, 256", "s_mov_b32 s75, 0x20000",
          "s_lshl_b32 s70, s38, 4" if PROBE == "xskew" else "s_mov_b32 s70, 0", "v_mov_b32 v10, s64", "v_not_b32 v11, v10", "s_mov_b64 exec, 1",
          "buffer_atomic_umax v10, v2, s[72:75], s70 offen sc1", "buffer_atomic_umax v11, v2, s[72:75], s70 offen offset:4 sc1", "s_mov_b64 exec, -1")
    sexpr("s3", [(X, 0, None, 14), (IDX, 1, 2, 11), (IDX, 3, None, 9), (IDX, 0, 1, 8)], WS_QP)
    vexpr("v16", [(1, 1, 13), (0, 1, 7)])
    A("s_mov_b64 exec, 0xf", f"buffer_load_dword v59, v16, s[52:55], s3 offen {PTF}", "s_mov_b64 exec, -1")
    sexpr("s3", [(X, 0, None, 14), (IDX, 0, 3, 11), (IDX, 3, None, 8), (X, 0, None, 10), (IDX, 0, 3, 7)], WS_HP)
    vexpr("v16", [(1, 1, 10), (0, 1, 7)])
    A("s_mov_b64 exec, 0xf", f"buffer_load_dword v58, v16, s[52:55], s3 offen {PTF}", "s_mov_b64 exec, -1")
    srd(48, "s28", "s29", 1024); srd(56, "s30", "s31", 2048); srd(40, "s22", "s23", 3584); srd(44, "s26", "s27", 1024)
    A("v_lshlrev_b32 v15, 4, v1", "buffer_load_dwordx4 v[72:75], v15, s[48:51], 0 offen")
    sexpr("s60", [(X, 0, None, 5), (IDX, 0, 2, 3), (IDX, 2, None, 0)])
    A("s_and_b32 s61, s60, 1")
    sexpr("s33", [("s60", 4, None, 5), ("s60", 1, 1, 4), ("s60", 2, 2, 2)])
    A("v_lshlrev_b32 v19, 1, v6", "s_lshl_b32 s4, s33, 1", "buffer_load_ushort v76, v19, s[44:47], s4 offen")
    A("s_mul_i32 s3, s38, 224", "s_lshr_b32 s4, s39, 2", "s_mul_i32 s5, s4, 28", "s_add_u32 s3, s3, s5", "s_lshl_b32 s3, s3, 1")
    vexpr("v22", [(0, 3, 3), (4, 2, 1)])
    A("buffer_load_ushort v77, v22, s[40:43], s3 offen")
    A("v_and_b32 v21, 7, v1", "v_cmp_gt_u32 s[42:43], 7, v21", "v_min_u32 v21, 6, v21")
    vexpr("v78", [(4, 2, 11), (4, 2, 7), (3, 1, 10)])
    A("v_lshl_add_u32 v78, v21, 4, v78")
    sexpr("s62", [("s5", 0, None, 2), (X, 0, 1, 7), (X, 0, None, 14), (X, 0, None, 10)], WS_HP)
    A(f"s_add_u32 s32, s62, {4*HPS}")
    vexpr("v79", [(3, 1, 6), (0, 3, 3), (4, 2, 1)])
    A("s_waitcnt lgkmcnt(0)")
    mktag()
    selregs()
    A("s_barrier", f"ds_read_b128 v[64:67], v15 offset:{L_X}", f"ds_read_b128 v[68:71], v15 offset:{L_X+1024}")
    sexpr("s3", [(X, 0, None, 11), (IDX, 4, None, 10), (IDX, 3, 1, 7)], WS_ML)
    A("v_lshlrev_b32 v16, 8, v1", "s_mov_b64 exec, 0xf", f"buffer_load_dword v59, v16, s[52:55], s3 offen {PTF}", "s_mov_b64 exec, -1")
    sexpr("s3", [(X, 0, None, 16), (IDX, 0, None, 11), (X, 0, None, 12), (IDX, 0, None, 7)], WS_OP)
    A("v_lshlrev_b32 v16, 7, v1", "s_mov_b64 exec, 0xffff", f"buffer_load_dword v58, v16, s[52:55], s3 offen {PTF}", "s_mov_b64 exec, -1")
    A("s_waitcnt vmcnt(2) lgkmcnt(0)")
    GW = 84; T = 92; P = 100
    for i in range(4): unpack(GW + 2*i, 72 + i)
    for bb in range(2):
        for i in range(4): unpack(T + 2*i, 64 + 4*bb + i)
        for i in range(8): A(f"v_mul_f32 v{T+i}, v{T+i}, v{GW+i}")
        for i in range(4): A(f"v_cvt_pk_bf16_f32 v{P+i}, v{T+2*i}, v{T+2*i+1}")
        for i in range(4): unpack(T + 2*i, P + i)
        for i in range(4): A(f"v_add_f32 v{T+2*i}, v{T+2*i}, v{T+2*i+1}")
        A(f"v_add_f32 v{T}, v{T}, v{T+2}", f"v_add_f32 v{T+4}, v{T+4}, v{T+6}", f"v_add_f32 v{104+bb}, v{T}, v{T+4}")
    A("s_nop 0")
    dpp_red("v_add_f32", [104, 105], ROW)
    swap_red("v_add_f32", [104, 105], 106)
    A("v_and_b32 v18, 1, v1", "v_cmp_eq_u32 vcc, 1, v18", "s_nop 1", "v_cndmask_b32 v104, v104, v105, vcc",
      "v_cvt_pk_bf16_f32 v104, v104, v104", "v_and_b32 v104, 0xffff0000, v104", f"v_mul_f32 v104, {f2u(-LOG2E):#x}, v104",
      "v_exp_f32 v104, v104", "s_nop 0", "v_add_f32 v104, 1.0, v104", "v_rcp_f32 v104, v104", "s_nop 0",
      "v_cvt_pk_bf16_f32 v104, v104, v104", "v_and_b32 v80, 0xffff0000, v104", "v_sub_f32 v81, 1.0, v80",
      "v_cvt_pk_bf16_f32 v81, v81, v81", "v_and_b32 v81, 0xffff0000, v81",
      "s_mov_b64 exec, 3", f"ds_write_b32 v8, v80 offset:{L_G}", f"ds_write_b32 v8, v81 offset:{L_G+8}", "s_mov_b64 exec, -1")
    A("v_readlane_b32 s5, v81, s61", "v_lshlrev_b32 v82, 16, v76", "v_lshlrev_b32 v62, 16, v77", "v_mul_f32 v82, s5, v82")
    sexpr("s3", [("s60", 0, None, 4)], WS_CP)
    A(f"v_mul_u32_u24 v60, {CPS}, v1", "s_lshl_b32 s61, s61, 10", "s_lshl_b32 s60, s33, 1", "s_add_u32 s60, s60, s61",
      "s_mov_b32 s50, 0x00010001", "s_mov_b32 s51, 0x00010001")
    if CPT is not None: A(f"buffer_load_dword v57, v60, s[52:55], s3 offen {CPT}")
    stamp()
    probe("gate")
    lds_wait(F_PR, NPH, sleep=SLEEP)
    mpoll([("buffer_load_dwordx4 v[24:27], v78, s[52:55], s62 offen sc1", 27), ("buffer_load_dwordx4 v[28:31], v78, s[52:55], s32 offen sc1", 31)],
          soffs=["s62", "s32"])
    stamp()
    probe("hps")
    kk = 2 * math.sqrt(2 / math.pi) * LOG2E
    unpack24(32, 24); unpack24(36, 28)
    for i in range(4): A(f"v_add_f32 v{32+i}, v{32+i}, v{36+i}")
    tred4(32)
    A(f"s_mov_b32 s4, {f2u(0.044715):#x}", "v_cvt_pk_bf16_f32 v24, v32, v32", "v_and_b32 v24, 0xffff0000, v24", "v_add_f32 v24, v24, v62",
      "v_cvt_pk_bf16_f32 v24, v24, v24", "v_and_b32 v24, 0xffff0000, v24",
      "v_mul_f32 v25, v24, v24", "v_fma_f32 v25, v25, s4, 1.0", "v_mul_f32 v25, v25, v24", f"v_mul_f32 v25, {f2u(-kk):#x}, v25",
      "v_exp_f32 v25, v25", "s_nop 0", "v_add_f32 v25, 1.0, v25", "v_rcp_f32 v25, v25", "s_nop 0", "v_mul_f32 v25, v25, v24",
      "v_cvt_pk_bf16_f32 v25, v25, v25", "v_cndmask_b32 v25, 0, v25, s[42:43]", f"ds_write_b16 v79, v25 offset:{L_HB}")
    flag_add(F_A if LATEB else F_H)
    if CPR is not None:
        sexpr("s62", [(X, 0, None, 15), (IDX, 0, None, 10), (X, 0, None, 10), (IDX, 2, None, 7)], WS_CP)
        A("s_not_b32 s4, s36", "v_mov_b32 v43, s4", "v_mov_b32 v40, 0", "v_mov_b32 v41, 0", "v_mov_b32 v42, 0")
        lds_wait(F_PR, NV - CPR, sleep=SLEEP)
        A("buffer_store_dwordx4 v[40:43], v15, s[52:55], s62 offen sc1", "s_waitcnt vmcnt(0)")
        flag_add(F_A)
    if CW == "A": lds_wait(F_A, 4, sleep=SLEEP)
    elif CPW: lds_wait(F_CP, CPW, sleep=SLEEP)
    else: lds_wait(F_OP, 4, sleep=SLEEP)
    if CPD: A(f"s_sleep {CPD}")
    stamp()
    def cld(k): A(f"buffer_load_dwordx4 {vr(84+4*k)}, v60, s[52:55], s3 offen sc1")
    A(f"s_mov_b32 s7, {CAPG}")
    for k in range(CN - 1):
        cld(k)
        if CSL: A(f"s_sleep {CSL}")
    A.label("L_cpoll")
    for k in range(CN):
        cld((k + CN - 1) % CN)
        A(f"s_waitcnt vmcnt({CN-1})")
        tagcheck([84+4*k+3])
        A(f"s_cbranch_scc1 L_cgot{k}")
    A("s_sub_u32 s7, s7, 1", "s_cmp_lg_u32 s7, 0", "s_cbranch_scc1 L_cpoll")
    for k in range(CN):
        A.label(f"L_cgot{k}")
        unpack24(32, 84+4*k)
        if k < CN - 1: A("s_branch L_cdone")
    A.label("L_cdone")
    stamp()
    tred4(32)
    dpp_red("v_add_f32", [32], ROW)
    A("v_add_f32 v32, v32, v82", "v_cvt_pk_bf16_f32 v32, v32, v32",
      "s_mov_b64 exec, s[50:51]", "buffer_store_short v32, v19, s[56:59], s60 offen",
      "s_cmp_lg_u32 s2, 0", "s_cbranch_scc1 L_noep", "s_mov_b64 exec, 1", "v_mov_b32 v26, s36",
      "buffer_store_dword v26, v2, s[52:55], 0 offen sc1")
    A.label("L_noep")
    A("s_mov_b64 exec, -1")
    stamp(True)
    if PROBE == "totmin":
        A("s_memrealtime s[66:67]", "s_waitcnt lgkmcnt(0)", "s_sub_u32 s66, s66, s64", "s_sub_u32 s66, 2000, s66", "v_mov_b32 v5, s66",
          "s_mov_b64 exec, 1", "ds_max_u32 v2, v5 offset:60", "s_mov_b64 exec, -1")
    if PROBE in ("xskew", "gskew"):
        A("buffer_load_dwordx2 v[10:11], v2, s[72:75], s70 offen sc1", "s_waitcnt vmcnt(0)", "v_add_u32 v5, v10, v11", "v_add_u32 v5, 1, v5",
          "s_mov_b64 exec, 1", "ds_max_u32 v2, v5 offset:60", "s_mov_b64 exec, -1")
    if PROBE:
        probe("tot")
        A("ds_read_b32 v5, v2 offset:60", "s_memrealtime s[66:67]", "s_waitcnt lgkmcnt(0)", "v_readfirstlane_b32 s68, v5",
          "s_min_u32 s68, s68, 5000", "s_add_u32 s68, s68, s66")
        A.label("L_probe")
        A("s_memrealtime s[66:67]", "s_waitcnt lgkmcnt(0)", "s_sub_u32 s69, s66, s68", "s_cmp_lt_i32 s69, 0", "s_cbranch_scc1 L_probe")
    write_stamps()
    A.label("L_end")
    A("s_endpgm")
    A.L += ['.section .rodata,"a"', ".p2align 6", f".amdhsa_kernel {NAME}_kernel", f"  .amdhsa_next_free_vgpr {128+8*QN}",
            "  .amdhsa_next_free_sgpr 102", f"  .amdhsa_accum_offset {128+8*QN}", "  .amdhsa_group_segment_fixed_size 0",
            "  .amdhsa_kernarg_size 112", "  .amdhsa_user_sgpr_count 2", "  .amdhsa_user_sgpr_kernarg_segment_ptr 1",
            "  .amdhsa_system_sgpr_workgroup_id_x 1", ".end_amdhsa_kernel"]
    open(out, "w").write("\n".join(A.L) + "\n")

if __name__ == "__main__":
    cfg = {}
    if len(sys.argv) > 1: cfg.update(json.loads(sys.argv[1]))
    for name, kw in cfg.items():
        gen(f"dev/{name}_st.s", stamps=True, **kw)
        gen(f"dev/{name}.s", stamps=False, **kw)
        gen(f"dev/{name}_stm.s", stamps="min", **kw)
```
